```python
import torch

def _softmax(x, axis=-1):
    return torch.softmax(x, dim=axis)

def _gelu(x):
    return torch.nn.functional.gelu(x, approximate='tanh')

def _silu(x):
    return torch.nn.functional.silu(x)

def _sigmoid(x):
    return torch.sigmoid(x)

def _layernorm(x, axis=-1, eps=1e-05):
    m = x.mean(dim=axis, keepdim=True)
    v = x.var(dim=axis, keepdim=True, unbiased=False)
    return (x - m) / torch.sqrt(v + eps)

def _scatter_add(tgt, idx, src, axis=0):
    return tgt.clone().index_add_(axis, idx, src)

def _segment_sum(src, seg, n):
    out = torch.zeros((n,) + src.shape[1:], dtype=src.dtype)
    return out.index_add_(0, seg, src)

def _pad(x, pw):
    flat = tuple((v for pair in reversed(pw) for v in pair))
    return torch.nn.functional.pad(x, flat)
kernel_name = 'adaLN_cond__linear_kernel_hedgehog__dense_activation_squared_relu__prompt'

def setup_inputs():

    _w = lambda a: (lambda t: t.to(torch.bfloat16) if t.is_floating_point() else t)(torch.as_tensor(a))

    def _A_setup():
        B, S, D, H = (1, 2048, 640, 32)
        Dh = D // H
        return {'x': _w((lambda *s: torch.randn(*s, dtype=torch.bfloat16) * 0.05)(B, S, D)), 'wqkv': _w((lambda *s: torch.randn(*s, dtype=torch.bfloat16) * 0.4)(D, 3 * D)), 'w_phi': _w((lambda *s: torch.randn(*s, dtype=torch.bfloat16) * 0.4)(H, Dh, Dh) * Dh ** (-0.5)), 'wo': _w((lambda *s: torch.randn(*s, dtype=torch.bfloat16) * 0.05)(D, D))}
    _A_in = _A_setup()

    def _B_setup():
        B, S, D, F = (1, 2048, 640, 1728)
        return {'x': _w((lambda *s: torch.randn(*s, dtype=torch.bfloat16) * 0.05)(B, S, D)), 'w1': _w((lambda *s: torch.randn(*s, dtype=torch.bfloat16) * 0.05)(D, F)), 'b1': _w((lambda *s: torch.randn(*s, dtype=torch.bfloat16) * 0.4)(F)), 'w2': _w((lambda *s: torch.randn(*s, dtype=torch.bfloat16) * 0.05)(F, D)), 'b2': _w((lambda *s: torch.randn(*s, dtype=torch.bfloat16) * 1.6)(D))}
    _B_in = _B_setup()
    return {'A_x': _A_in['x'], 'A_wqkv': _A_in['wqkv'], 'A_w_phi': _A_in['w_phi'], 'A_wo': _A_in['wo'], 'B_x': _B_in['x'], 'B_w1': _B_in['w1'], 'B_b1': _B_in['b1'], 'B_w2': _B_in['w2'], 'B_b2': _B_in['b2'], 'c': _w((lambda *s: torch.randn(*s, dtype=torch.bfloat16) * 0.1)(1, 640) * 8.0), 'w_mod': _w((lambda *s: torch.randn(*s, dtype=torch.bfloat16) * 0.1)(640, 6 * 640) * 640 ** (-0.5) * 8.0)}

def reference(A_x, A_wqkv, A_w_phi, A_wo, B_x, B_w1, B_b1, B_w2, B_b2, c, w_mod):

    def _A_ref(x, wqkv, w_phi, wo):
        B, S, D = x.shape
        H = 32
        Dh = D // H
        qkv = (lambda x, *d: x.permute(*d))((x @ wqkv).reshape(B, S, 3, H, Dh), 2, 0, 3, 1, 4)
        q, k, v = (qkv[0], qkv[1], qkv[2])
        pq = torch.einsum('bhsd,hdf->bhsf', q, w_phi)
        pk = torch.einsum('bhsd,hdf->bhsf', k, w_phi)
        phi_q = torch.concatenate([_softmax(pq, axis=-1), _softmax(-pq, axis=-1)], axis=-1)
        phi_k = torch.concatenate([_softmax(pk, axis=-1), _softmax(-pk, axis=-1)], axis=-1)
        kv = torch.einsum('bhsf,bhsd->bhfd', phi_k, v)
        z = torch.einsum('bhsf->bhf', phi_k)
        num = torch.einsum('bhqf,bhfd->bhqd', phi_q, kv)
        den = torch.einsum('bhqf,bhf->bhq', phi_q, z)[..., None] + 1e-06
        o = num / den
        return (lambda x, *d: x.permute(*d))(o, 0, 2, 1, 3).reshape(B, S, D) @ wo

    def _B_ref(x, w1, b1, w2, b2):
        h = torch.einsum('bsd,df->bsf', x, w1) + b1
        zero = torch.zeros_like(h)
        r = torch.where(h > zero, h, zero)
        h = r * r
        out = torch.einsum('bsf,fd->bsd', h, w2) + b2
        return out
    x = A_x
    mod = (_silu(c) @ w_mod).reshape(c.shape[0], 6, 1, -1)
    sa, ca, ga, sb, cb, gb = (mod[:, 0].clone(), mod[:, 1].clone(), mod[:, 2].clone(), mod[:, 3].clone(), mod[:, 4].clone(), mod[:, 5].clone())
    h = _layernorm(x, axis=-1) * (1 + ca) + sa
    x = x + ga * _A_ref(h, A_wqkv, A_w_phi, A_wo)
    h = _layernorm(x, axis=-1) * (1 + cb) + sb
    x = x + gb * _B_ref(h, B_w1, B_b1, B_w2, B_b2)
    return x
```

```python
import re

TRANS = ("v_exp_f32", "v_log_f32", "v_rcp_f32", "v_rsq_f32", "v_sqrt_f32", "v_sin_f32", "v_cos_f32", "v_rcp_iflag_f32")
REG_RE = re.compile(r"^(-|abs\()?([vas])(\d+|\[(\d+):(\d+)\])\)?$")

def regs_of(tok):
    tok = tok.strip()
    if tok in ("vcc", "exec", "m0", "scc"):
        return {(tok, 0)}
    if tok in ("vcc_lo", "vcc_hi"):
        return {("vcc", 0)}
    if tok in ("exec_lo", "exec_hi"):
        return {("exec", 0)}
    m = REG_RE.match(tok)
    if not m:
        return set()
    k = m.group(2)
    if m.group(4) is not None:
        return {(k, i) for i in range(int(m.group(4)), int(m.group(5)) + 1)}
    return {(k, int(m.group(3)))}

def split_ops(s):
    out, depth, cur = [], 0, ""
    for ch in s:
        if ch in "[(": depth += 1
        if ch in "])": depth -= 1
        if ch == "," and depth == 0:
            out.append(cur.strip()); cur = ""
        else:
            cur += ch
    if cur.strip(): out.append(cur.strip())
    return out

class Ins:
    __slots__ = ("text", "op", "ops", "mods", "dst", "src", "cls", "a", "b", "c", "passes", "dpp", "lds", "sregs_vmem")
    def __init__(self, text):
        self.text = text
        t = text.split(";")[0].strip()
        parts = t.split(None, 1)
        self.op = parts[0]
        rest = parts[1] if len(parts) > 1 else ""
        ops = split_ops(rest)
        mods = ""
        if ops:
            last = ops[-1].split()
            if len(last) > 1 and not self.op.startswith("s_waitcnt"):
                ops[-1] = last[0]; mods = " ".join(last[1:])
        self.ops, self.mods = ops, mods
        self.dst, self.src = set(), set()
        self.a = self.b = self.c = set()
        self.passes = 0; self.dpp = False; self.lds = False; self.sregs_vmem = set()
        op = self.op
        R = lambda i: regs_of(ops[i]) if i < len(ops) else set()
        allsrc = lambda i: set().union(*[regs_of(o) for o in ops[i:]]) if len(ops) > i else set()
        if op.startswith("v_mfma"):
            self.cls = "mfma"; self.dst = R(0); self.a, self.b, self.c = R(1), R(2), R(3)
            self.src = self.a | self.b | self.c
            self.passes = 8 if "32x32" in op else 4
        elif op.startswith("v_"):
            self.cls = "valu"
            self.dpp = ("row_" in mods) or ("quad_perm" in mods) or ("wave_" in mods)
            base = op.replace("_e32", "").replace("_e64", "").replace("_dpp", "")
            if base.startswith("v_cmp"):
                self.dst = R(0); self.src = allsrc(1)
            elif base.startswith("v_permlane") and "swap" in base:
                self.dst = R(0) | R(1); self.src = R(0) | R(1)
            elif base.startswith(("v_fmac", "v_dot2c", "v_pk_fmac", "v_writelane")):
                self.dst = R(0); self.src = allsrc(0)
            elif base in ("v_add_co_u32", "v_sub_co_u32", "v_addc_co_u32"):
                self.dst = R(0) | R(1); self.src = allsrc(2)
            else:
                self.dst = R(0); self.src = allsrc(1)
                if base == "v_cndmask_b32" and len(ops) == 3: self.src |= {("vcc", 0)}
        elif op.startswith("ds_"):
            self.cls = "ds"
            if op.startswith(("ds_read", "ds_bpermute", "ds_permute", "ds_swizzle")):
                self.dst = R(0); self.src = allsrc(1)
            else:
                self.src = allsrc(0)
        elif op.startswith(("buffer_", "global_")):
            self.cls = "vmem"
            toks = mods.split()
            self.lds = "lds" in toks
            if op.startswith("buffer_load") and not self.lds:
                self.dst = R(0); self.src = allsrc(1)
            elif op.startswith("buffer_atomic") and "sc0" in toks:
                self.dst = R(0); self.src = allsrc(0)
            elif op in ("buffer_inv", "buffer_wbl2"):
                pass
            else:
                self.src = allsrc(0)
            if self.lds: self.src |= {("m0", 0)}
            self.sregs_vmem = {r for r in self.src if r[0] == "s"}
        elif op.startswith("s_"):
            self.cls = "salu"
            if op.startswith(("s_load", "s_buffer_load", "s_memtime", "s_memrealtime")):
                self.cls = "smem"; self.dst = R(0); self.src = allsrc(1)
            elif op.startswith(("s_waitcnt", "s_nop", "s_barrier", "s_branch", "s_cbranch", "s_endpgm", "s_sleep", "s_setprio")):
                self.cls = "ctl"
                if op == "s_cbranch_vccnz" or op == "s_cbranch_vccz": self.src = {("vcc", 0)}
            elif op.startswith("s_cmp"):
                self.src = allsrc(0)
            elif op.startswith(("s_setpc",)):
                self.cls = "ctl"; self.src = allsrc(0)
            else:
                self.dst = R(0); self.src = allsrc(1)
                if "saveexec" in op: self.dst |= {("exec", 0)}
        else:
            raise ValueError("unknown instruction: " + text)

class Asm:
    def __init__(self):
        self.items = []
    def __call__(self, text):
        for ln in text.split("\n"):
            s = ln.strip()
            if not s: continue
            if s.startswith(";") or s.startswith("."):
                self.items.append(("t", s))
            elif s.endswith(":"):
                self.items.append(("l", s[:-1]))
            else:
                self.items.append(("i", Ins(s)))
    def label(self, name): self.items.append(("l", name))
    def raw(self, text): self.items.append(("t", text))

    def _need(self, ev, age, ins):
        kind, regs, extra = ev
        n = 0
        if kind == "valu_v":
            if ins.cls == "mfma" and regs & ins.src: n = max(n, 2)
            if ins.cls == "valu":
                base = ins.op
                if base.startswith(("v_readfirstlane", "v_readlane")) and regs & ins.src: n = max(n, 1)
                if base.startswith("v_permlane") and regs & ins.src: n = max(n, 2)
                if ins.dpp and regs & regs_of(ins.ops[1]): n = max(n, 2)
        elif kind == "trans":
            if ins.cls in ("valu",) and regs & ins.src and not ins.op.startswith(TRANS): n = max(n, 1)
            if ins.cls in ("mfma",) and regs & ins.src: n = max(n, 2)
        elif kind == "valu_s":
            if ins.cls == "valu" and regs & ins.src:
                n = max(n, 4 if ins.op.startswith(("v_readlane", "v_writelane")) else 2)
            if ins.cls == "vmem" and regs & ins.sregs_vmem: n = max(n, 5)
            if ins.cls in ("salu", "ctl", "smem") and regs & ins.src: n = max(n, 1 if ins.cls == "ctl" else 1)
        elif kind == "mfma_d":
            p = extra[0]
            if ins.cls == "mfma":
                if regs & (ins.a | ins.b): n = max(n, 8 if p == 4 else 12)
                if regs & ins.c:
                    if not (ins.c == regs and ins.passes == p): n = max(n, 6 if p == 4 else 10)
                elif regs & ins.dst: n = max(n, 8 if p == 4 else 12)
            elif ins.cls in ("valu", "vmem", "ds"):
                if regs & (ins.src | ins.dst): n = max(n, 8 if p == 4 else 12)
        elif kind == "mfma_c":
            p = extra[0]
            if ins.cls == "valu" and regs & ins.dst: n = max(n, 3 if p == 4 else 7)
        elif kind == "m0":
            if ins.cls == "vmem" and ins.lds: n = max(n, 1)
        elif kind == "wstore":
            if ins.cls == "valu" and regs & ins.dst: n = max(n, 2)
            elif ins.cls in ("mfma", "ds", "vmem") and regs & ins.dst: n = max(n, 1)
        elif kind == "salu_exec":
            pass
        return max(0, n - age)

    def _events(self, ins):
        ev = []
        if ins.cls == "valu":
            vd = {r for r in ins.dst if r[0] in "va"}
            sd = {r for r in ins.dst if r[0] in ("s", "vcc")}
            if vd: ev.append(("valu_v", vd, ()))
            if vd and ins.op.startswith(TRANS): ev.append(("trans", vd, ()))
            if sd: ev.append(("valu_s", sd, ()))
        elif ins.cls == "mfma":
            ev.append(("mfma_d", ins.dst, (ins.passes,)))
            if ins.c: ev.append(("mfma_c", ins.c, (ins.passes,)))
        elif ins.cls == "salu":
            if ("m0", 0) in ins.dst: ev.append(("m0", {("m0", 0)}, ()))
        elif ins.cls == "vmem":
            if ("store" in ins.op) and ("x4" in ins.op or "x3" in ins.op):
                ev.append(("wstore", regs_of(ins.ops[0]), ()))
        return ev

    def finalize(self):
        out = []
        state = []
        pending = {}
        nops = 0
        for kind, it in self.items:
            if kind == "t":
                out.append(it); continue
            if kind == "l":
                if it in pending:
                    state = state + [[e, a] for e, a in pending.pop(it)]
                out.append(it + ":"); continue
            ins = it
            need = 0
            for e, a in state:
                need = max(need, self._need(e, a, ins))
            while need > 0:
                k = min(need, 16)
                out.append(f"    s_nop {k-1}"); nops += 1
                for s in state: s[1] += k
                need -= k
            out.append("    " + ins.text)
            step = 1
            if ins.op == "s_nop": step = int(ins.ops[0], 0) + 1
            for s in state: s[1] += step
            state = [s for s in state if s[1] < 24]
            state += [[e, 0] for e in self._events(ins)]
            if ins.op.startswith(("s_branch", "s_cbranch")):
                tgt = ins.ops[0]
                pending.setdefault(tgt, []).extend([(e, a) for e, a in state])
            if ins.op in ("s_branch", "s_endpgm") or ins.op.startswith("s_setpc"):
                state = []
        self.n_nops = nops
        return "\n".join(out) + "\n"

    def check_waits(self):
        vm, lg = [], []
        errs = []
        for kind, it in self.items:
            if kind != "i": continue
            ins = it
            if ins.op == "s_waitcnt":
                txt = ins.text
                m = re.search(r"vmcnt\((\d+)\)", txt)
                if m:
                    n = int(m.group(1)); vm = vm[len(vm) - n:] if n < len(vm) else vm
                    if n == 0: vm = []
                m = re.search(r"lgkmcnt\((\d+)\)", txt)
                if m:
                    n = int(m.group(1))
                    if n == 0: lg = []
                    elif not any(e[2] == "smem" for e in lg):
                        lg = lg[len(lg) - n:] if n < len(lg) else lg
                continue
            if ins.op == "s_endpgm": vm, lg = [], []; continue
            touched = ins.src | ins.dst
            for q in (vm, lg):
                for d, t, k in q:
                    if d & touched:
                        errs.append(f"unwaited: '{ins.text}' touches result of '{t}'")
            if ins.cls == "vmem":
                vm.append((set(ins.dst), ins.text, "vm"))
                if len(vm) > 63: vm = vm[-63:]
            elif ins.cls == "ds":
                lg.append((set(ins.dst), ins.text, "ds"))
            elif ins.cls == "smem":
                lg.append((set(ins.dst), ins.text, "smem"))
        return errs

class VMQ:
    def __init__(self, asm):
        self.asm = asm; self.q = []
    def issue(self, tag): self.q.append(tag)
    def wait(self, *tags, extra=""):
        idx = -1
        for i, t in enumerate(self.q):
            if t in tags: idx = i
        if idx < 0:
            if extra: self.asm("s_waitcnt " + extra)
            return
        n = len(self.q) - 1 - idx
        n = min(n, 63)
        self.asm(f"s_waitcnt vmcnt({n}) {extra}".strip())
        self.q = self.q[len(self.q) - n:] if n > 0 else []
    def drain(self):
        self.asm("s_waitcnt vmcnt(0)"); self.q = []

class LGQ:
    def __init__(self, asm):
        self.asm = asm; self.q = []
    def issue(self, tag): self.q.append(tag)
    def wait(self, *tags):
        idx = -1
        for i, t in enumerate(self.q):
            if t in tags: idx = i
        if idx < 0: return
        n = min(len(self.q) - 1 - idx, 15)
        self.asm(f"s_waitcnt lgkmcnt({n})")
        self.q = self.q[len(self.q) - n:] if n > 0 else []
    def drain(self):
        self.asm("s_waitcnt lgkmcnt(0)"); self.q = []
```

```python
from asmlib import LGQ
import gen as G
from gen import srd, OOB, sNONCE, sRB, sJ, sW
from gen_main import poll

EX = 143360
LD_EXT, LD_UT = EX, EX + 3840
X1 = 224
sRH, sKH, sCB, sRT = 62, 63, 64, 65
sT0, sN6 = 66, 67

def tr_addr(g, dst, pitch, extra_s=None):
    a = g.a
    a(f"""
    v_lshrrev_b32 v2, 4, v1
    v_bfe_u32 v3, v1, 2, 2
    v_lshl_add_u32 v2, v2, 2, v3
    v_mul_u32_u24 v2, {pitch}, v2
    v_and_b32 v3, 3, v1
    v_lshl_add_u32 v{dst}, v3, 3, v2
    """)
    if extra_s: a(f"v_add_u32 v{dst}, {extra_s}, v{dst}")

def unit_patterns(g, base, n, per_row, magic, row_bytes, col_s):
    a = g.a
    for k in range(n):
        a(f"""
        v_add_u32 v2, {64*k}, v1
        v_mul_u32_u24 v3, {magic}, v2
        v_lshrrev_b32 v3, 16, v3
        v_mul_u32_u24 v4, {per_row}, v3
        v_sub_u32 v4, v2, v4
        v_mul_u32_u24 v3, {row_bytes}, v3
        v_lshl_add_u32 v3, v4, 4, v3
        v_add_u32 v{base+k}, {col_s}, v3
        """)

def gemm_steps(g, nsteps, ntiles, aaddr, aoff, AB, acc, bfrag, hooks, lg):
    a = g.a
    def areads(n):
        s = AB + (n % 2) * 4 * ntiles
        out = []
        for ft in range(ntiles):
            for h in range(2):
                reg, off = aoff(n, ft, h)
                out.append((f"ds_read_b64_tr_b16 v[{s+4*ft+2*h}:{s+4*ft+2*h+1}], {reg} offset:{off}", ("A", n, ft)))
        return out
    hooks("pre", 0)
    for t, tag in areads(0): a(t); lg.issue(tag)
    for n in range(nsteps):
        hooks("step", n)
        nxt = areads(n + 1) if n + 1 < nsteps else []
        extra = hooks("ops", n) or []
        s = AB + (n % 2) * 4 * ntiles
        k = 0
        for ft in range(ntiles):
            lg.wait(("A", n, ft))
            for bt in range(2):
                d = acc(ft, bt)
                a(f"v_mfma_f32_16x16x32_bf16 v[{d}:{d+3}], v[{s+4*ft}:{s+4*ft+3}], {bfrag(n, bt)}, " + (f"v[{d}:{d+3}]" if n else "0"))
                if nxt:
                    t, tag = nxt.pop(0); a(t); lg.issue(tag)
                if extra and (k % 2 == 1):
                    op = extra.pop(0); a(op[0])
                    if op[1] is not None: g.vm.issue(op[1])
                k += 1
        for t, tag in nxt: a(t); lg.issue(tag)
        for op in extra:
            a(op[0])
            if op[1] is not None: g.vm.issue(op[1])

def exchange(g, acc):
    a = g.a
    a(f"""
    v_lshlrev_b32 v2, 4, v1
    s_mul_i32 s70, s{sW}, 5120
    s_add_u32 s70, s70, {EX}
    v_add_u32 v3, s70, v2
    s_xor_b32 s71, s{sW}, 2
    s_mul_i32 s71, s71, 5120
    s_add_u32 s71, s71, {EX}
    v_add_u32 v4, s71, v2
    """)
    for ft in range(5):
        d = acc(ft, 1); a(f"ds_write_b128 v3, v[{d}:{d+3}] offset:{1024*ft}")
    a("s_waitcnt lgkmcnt(0)\n s_barrier")
    for ft in range(5): a(f"ds_read_b128 v[{8+4*ft}:{11+4*ft}], v4 offset:{1024*ft}")
    a("s_waitcnt lgkmcnt(0)")
    for ft in range(5):
        d = acc(ft, 0)
        a(f"v_pk_add_f32 v[{d}:{d+1}], v[{d}:{d+1}], v[{8+4*ft}:{9+4*ft}]\n v_pk_add_f32 v[{d+2}:{d+3}], v[{d+2}:{d+3}], v[{10+4*ft}:{11+4*ft}]")

def phaseC(g):
    a, vm = g.a, g.vm
    lg = LGQ(a)
    a(f"""
    s_and_b32 s{sRH}, s{sW}, 1
    s_lshr_b32 s{sKH}, s{sW}, 1
    s_lshr_b32 s{sCB}, s{sJ}, 1
    s_lshl_b32 s70, s{sRB}, 3
    s_and_b32 s71, s{sJ}, 1
    s_lshl_b32 s71, s71, 2
    s_add_u32 s70, s70, s71
    s_lshl_b32 s71, s{sRH}, 1
    s_add_u32 s70, s70, s71
    s_add_u32 s{sRT}, s70, s{sKH}
    """)
    a(f"""
    v_and_b32 v2, 15, v1
    s_lshl_b32 s70, s{sRT}, 4
    v_add_u32 v2, s70, v2                   ; row
    v_mul_u32_u24 v2, 1280, v2
    v_lshrrev_b32 v3, 4, v1                 ; g
    s_mul_i32 s71, s{sCB}, 160
    v_lshl_add_u32 v2, v3, 3, v2
    v_add_u32 v38, s71, v2
    v_lshlrev_b32 v3, 4, v3
    s_mul_i32 s71, s{sCB}, 320
    v_add_u32 v37, s71, v3
    """)
    for ft in range(5):
        a(f"buffer_load_dwordx2 v[{184+2*ft}:{185+2*ft}], v38, {srd('X')}, 0 offen offset:{32*ft}"); vm.issue("cx")
    a(f"s_mov_b32 s72, {G.OFF_MODV + 1280*4}\n s_mov_b32 s73, {G.OFF_MODV + 2560*4}")
    for ft in range(5):
        a(f"buffer_load_dwordx4 v[{80+4*ft}:{83+4*ft}], v37, {srd('WS')}, s72 offen offset:{64*ft} sc1"); vm.issue("cx")
        a(f"buffer_load_dwordx4 v[{100+4*ft}:{103+4*ft}], v37, {srd('WS')}, s73 offen offset:{64*ft} sc1"); vm.issue("cx")
    tr_addr(g, 36, 160)
    a(f"s_mul_i32 s70, s{sKH}, {10*5120}\n v_add_u32 v36, s70, v36\n v_lshlrev_b32 v39, 4, v1")
    poll(g, 4, f"s_lshl_b32 s70, s{sRB}, 7\n s_add_u32 s70, s70, {G.OFF_FLAGO}", False, 0xC0)
    g.stamp()
    a(f"""
    s_mul_i32 s70, s{sKH}, 10240
    s_add_u32 s70, s70, {G.OFF_O}
    s_mul_i32 s72, s{sRT}, 20480
    s_add_u32 s72, s72, s70
    s_xor_b32 s73, s{sRT}, 1
    s_mul_i32 s73, s73, 20480
    s_add_u32 s73, s73, s70
    """)
    for n in range(10):
        for sl in range(2):
            a(f"buffer_load_dwordx4 a[{8*n+4*sl}:{8*n+4*sl+3}], v39, {srd('WS')}, s{72+sl} offen offset:{1024*(n%4)} sc1"); vm.issue(("o", n))
        if n % 4 == 3: a("s_add_u32 s72, s72, 4096\n s_add_u32 s73, s73, 4096")
    acc = lambda ft, bt: 128 + 8*ft + 4*bt
    def hooks(kind, n):
        if kind == "step": vm.wait(("o", n))
        return None
    gemm_steps(g, 10, 5, "v36", lambda n, ft, h: ("v36", n*5120 + ft*32 + h*2560), 40, acc, lambda n, bt: f"a[{8*n+4*bt}:{8*n+4*bt+3}]", hooks, lg)
    g.stamp()
    exchange(g, acc)
    for ft in range(5):
        d = acc(ft, 0)
        g.lo(8, 184+2*ft); g.hi(9, 184+2*ft); g.lo(10, 185+2*ft); g.hi(11, 185+2*ft)
        for h in range(2):
            a(f"v_pk_fma_f32 v[{X1+4*ft+2*h}:{X1+4*ft+2*h+1}], v[{d+2*h}:{d+2*h+1}], v[{80+4*ft+2*h}:{81+4*ft+2*h}], v[{8+2*h}:{9+2*h}]")
    for k in range(20): a(f"v_add_f32 v{100+k}, 1.0, v{100+k}")
    for k in range(10): a(f"v_cvt_pk_bf16_f32 v{8+k}, v{100+2*k}, v{101+2*k}")
    for k in range(10):
        g.lo(100+2*k, 8+k); g.hi(101+2*k, 8+k)
    for k in range(10): a(f"v_pk_mul_f32 v[{100+2*k}:{101+2*k}], v[{100+2*k}:{101+2*k}], v[{X1+2*k}:{X1+2*k+1}]")
    for k in range(10): a(f"v_cvt_pk_bf16_f32 v{20+k}, v{100+2*k}, v{101+2*k}")
    a(f"v_pk_add_f32 v[8:9], v[{X1}:{X1+1}], v[{X1+2}:{X1+3}]\n v_pk_mul_f32 v[10:11], v[{X1}:{X1+1}], v[{X1}:{X1+1}]\n v_pk_fma_f32 v[10:11], v[{X1+2}:{X1+3}], v[{X1+2}:{X1+3}], v[10:11]")
    for k in range(2, 10):
        a(f"v_pk_add_f32 v[8:9], v[8:9], v[{X1+2*k}:{X1+2*k+1}]\n v_pk_fma_f32 v[10:11], v[{X1+2*k}:{X1+2*k+1}], v[{X1+2*k}:{X1+2*k+1}], v[10:11]")
    a("v_add_f32 v8, v8, v9\n v_add_f32 v9, v10, v11")
    for sw in ("v_permlane16_swap_b32", "v_permlane32_swap_b32"):
        a(f"v_mov_b32 v10, v8\n v_mov_b32 v11, v9\n s_nop 0\n {sw} v10, v8\n {sw} v11, v9\n v_add_f32 v8, v8, v10\n v_add_f32 v9, v9, v11")
    n = len(a.items)
    a(f"""
    v_and_b32 v2, 15, v1
    v_lshlrev_b32 v2, 3, v2
    v_cmp_gt_u32 vcc, 16, v1
    v_mov_b32 v3, {OOB}
    v_cndmask_b32 v2, v3, v2, vcc
    s_lshl_b32 s70, s{sRT}, 3
    s_add_u32 s70, s70, s{sCB}
    s_lshl_b32 s70, s70, 7
    s_add_u32 s70, s70, {G.OFF_STATS}
    buffer_store_dwordx2 v[8:9], v2, {srd('WS')}, s70 offen sc1
    s_mul_i32 s70, s{sCB}, 5
    s_lshr_b32 s70, s70, 1
    s_lshl_b32 s70, s70, 10
    s_mul_i32 s71, s{sRT}, 20480
    s_add_u32 s70, s70, s71
    s_add_u32 s70, s70, {G.OFF_X1S}
    s_and_b32 s71, s{sCB}, 1
    s_cmp_eq_u32 s71, 0
    s_cbranch_scc0 L_CO{n}
    buffer_store_dwordx4 v[20:23], v39, {srd('WS')}, s70 offen sc1
    buffer_store_dwordx4 v[24:27], v39, {srd('WS')}, s70 offen offset:1024 sc1
    buffer_store_dwordx2 v[28:29], v39, {srd('WS')}, s70 offen offset:2048 sc1
    s_branch L_CE{n}
    L_CO{n}:
    buffer_store_dwordx2 v[20:21], v39, {srd('WS')}, s70 offen offset:8 sc1
    buffer_store_dwordx4 v[22:25], v39, {srd('WS')}, s70 offen offset:1024 sc1
    buffer_store_dwordx4 v[26:29], v39, {srd('WS')}, s70 offen offset:2048 sc1
    L_CE{n}:
    """)
    for _ in range(4): vm.issue("xs")
    a(f"""
    s_lshr_b32 s70, s{sJ}, 2
    s_mul_i32 s70, s70, 27
    s_and_b32 s71, s{sJ}, 3
    s_mul_i32 s72, s71, 7
    s_add_u32 s{sT0}, s70, s72
    s_cmp_eq_u32 s71, 3
    s_cselect_b32 s{sN6}, 1, 0
    s_lshl_b32 s76, s{sT0}, 5
    """)
    unit_patterns(g, 200, 7, 14, 4682, 3456, "s76")
    a(f"s_mul_i32 s77, s{sW}, {5*32*3456}\n s_mul_i32 s78, s{sW}, {5*7168}")
    ops = []
    for st in range(5):
        for k in range(7):
            pre = f"s_add_u32 m0, s78, {st*7168 + k*1024}\n s_nop 0\n"
            post = f"\n s_add_u32 s77, s77, {32*3456}" if k == 6 else ""
            ops.append(pre + f"buffer_load_dwordx4 v{200+k}, {srd('W1')}, s77 offen lds" + post)
    npre = g.o.get("w1pre", 14)
    for op in ops[:npre]: a(op); vm.issue("w1")
    vm.wait("xs"); a("s_barrier")
    g.set_flag(f"s_lshl_b32 s70, s{sRB}, 7\n s_lshl_b32 s71, s{sJ}, 2\n s_add_u32 s70, s70, s71\n s_add_u32 s70, s70, {G.OFF_FLAGX}")
    for op in ops[npre:]: a(op); vm.issue("w1")
    g.stamp()

def phaseD(g):
    a, vm = g.a, g.vm
    lg = LGQ(a)
    a(f"""
    v_lshlrev_b32 v2, 4, v0
    v_cmp_gt_u32 vcc, 160, v0
    v_mov_b32 v3, {OOB}
    v_cndmask_b32 v2, v3, v2, vcc
    s_mov_b32 s72, {G.OFF_MODV + 2560*4}
    s_mov_b32 s73, {G.OFF_MODV + 1920*4}
    buffer_load_dwordx4 v[8:11], v2, {srd('WS')}, s72 offen sc1
    buffer_load_dwordx4 v[12:15], v2, {srd('WS')}, s73 offen sc1
    v_lshrrev_b32 v4, 4, v1                 ; g
    v_lshlrev_b32 v4, 3, v4
    s_lshl_b32 s70, s{sT0}, 5
    s_add_u32 s75, s{sW}, 4
    s_min_u32 s75, s75, 6
    s_lshl_b32 s71, s{sW}, 5
    s_add_u32 s71, s71, s70
    buffer_load_dwordx2 v[16:17], v4, {srd('B1')}, s71 offen
    s_lshl_b32 s71, s75, 5
    s_add_u32 s71, s71, s70
    buffer_load_dwordx2 v[18:19], v4, {srd('B1')}, s71 offen
    """)
    for _ in range(4): vm.issue("e")
    vm.wait("e")
    for k in range(4): a(f"v_add_f32 v{8+k}, 1.0, v{8+k}")
    a(f"""
    v_cvt_pk_bf16_f32 v8, v8, v9
    v_cvt_pk_bf16_f32 v9, v10, v11
    v_cvt_pk_bf16_f32 v10, v12, v13
    v_cvt_pk_bf16_f32 v11, v14, v15
    v_lshlrev_b32 v2, 3, v0
    v_add_u32 v2, {LD_EXT}, v2
    v_mov_b32 v12, 0
    v_mov_b32 v13, 0
    v_cmp_gt_u32 vcc, 160, v0
    s_and_saveexec_b64 s[70:71], vcc
    ds_write_b64 v2, v[8:9]
    ds_write_b64 v2, v[10:11] offset:1280
    ds_write_b64 v2, v[12:13] offset:2560
    s_mov_b64 exec, s[70:71]
    s_waitcnt lgkmcnt(0)
    s_barrier
    """)
    tr_addr(g, 36, 224)
    a(f"""
    v_add_u32 v37, {8*7168}, v36
    v_add_u32 v38, {16*7168}, v36
    v_and_b32 v2, 15, v1                    ; n
    v_min_u32 v3, 2, v2
    v_mul_u32_u24 v3, 1280, v3
    v_lshrrev_b32 v4, 4, v1
    v_lshl_add_u32 v3, v4, 3, v3
    v_add_u32 v35, {LD_EXT}, v3
    s_lshl_b32 s70, s{sW}, 5
    s_lshl_b32 s71, s75, 5
    """)
    for k in range(3):
        a(f"v_add_u32 v{26+k}, s70, v{36+k}\n v_add_u32 v{29+k}, s71, v{36+k}")
    for grp in range(4):
        for n in range(5*grp, 5*grp + 5):
            b = 40 + 12*(n % 5)
            a(f"ds_read_b64 v[{b}:{b+1}], v35 offset:{64*n}\n ds_read_b64 v[{b+2}:{b+3}], v35 offset:{64*n+32}")
            for t in range(2):
                for h in range(2):
                    a(f"ds_read_b64_tr_b16 v[{b+4+4*t+2*h}:{b+5+4*t+2*h}], v{26+3*t+n//8} offset:{(n%8)*7168 + h*3584}")
        a("s_waitcnt lgkmcnt(0)")
        for n in range(5*grp, 5*grp + 5):
            b = 40 + 12*(n % 5)
            for t in range(2):
                d = 100 + 4*t
                a(f"v_mfma_f32_16x16x32_bf16 v[{d}:{d+3}], v[{b+4+4*t}:{b+7+4*t}], v[{b}:{b+3}], " + (f"v[{d}:{d+3}]" if n else "0"))
    a(f"""
    v_and_b32 v2, 15, v1
    v_cmp_eq_u32 vcc, 1, v2
    """)
    for t in range(2):
        g.lo(8, 16+2*t); g.hi(9, 16+2*t); g.lo(10, 17+2*t); g.hi(11, 17+2*t)
        for k in range(4):
            a(f"v_cndmask_b32 v{8+k}, 0, v{8+k}, vcc\n v_add_f32 v{100+4*t+k}, v{100+4*t+k}, v{8+k}")
    a(f"""
    v_mul_u32_u24 v3, 448, v2
    v_lshrrev_b32 v4, 4, v1
    v_lshl_add_u32 v3, v4, 4, v3
    v_add_u32 v3, {LD_UT}, v3
    s_lshl_b32 s70, s{sW}, 6
    v_add_u32 v5, s70, v3
    s_lshl_b32 s70, s75, 6
    v_add_u32 v6, s70, v3
    v_cmp_gt_u32 vcc, 2, v2
    s_and_saveexec_b64 s[70:71], vcc
    ds_write_b128 v5, v[100:103]
    ds_write_b128 v6, v[104:107]
    s_mov_b64 exec, s[70:71]
    s_waitcnt lgkmcnt(0)
    v_lshlrev_b32 v39, 4, v1
    """)
    poll(g, 4, f"s_lshl_b32 s70, s{sRB}, 7\n s_add_u32 s70, s70, {G.OFF_FLAGX}", False, 0xD0)
    g.stamp()
    a(f"""
    s_lshl_b32 s70, s{sRB}, 3
    s_lshl_b32 s71, s{sW}, 1
    s_add_u32 s74, s70, s71
    s_mul_i32 s72, s74, 20480
    s_add_u32 s72, s72, {G.OFF_X1S}
    s_add_u32 s73, s72, 20480
    """)
    def xload(n):
        ops = []
        for bt in range(2):
            post = "\n s_add_u32 s72, s72, 4096\n s_add_u32 s73, s73, 4096" if (n % 4 == 3 and bt == 1) else ""
            ops.append((f"buffer_load_dwordx4 a[{8*n+4*bt}:{8*n+4*bt+3}], v39, {srd('WS')}, s{72+bt} offen offset:{1024*(n%4)} sc1" + post, ("x", n)))
        return ops
    LEAD = g.o.get("dlead", 8)
    for n in range(LEAD):
        for op in xload(n): a(op[0]); vm.issue(op[1])
    a(f"""
    v_and_b32 v2, 15, v1
    v_lshrrev_b32 v3, 4, v1
    v_lshlrev_b32 v3, 8, v3
    v_lshl_add_u32 v2, v2, 3, v3
    s_lshl_b32 s70, s74, 10
    s_add_u32 s70, s70, {G.OFF_STATS}
    buffer_load_dwordx2 v[8:9], v2, {srd('WS')}, s70 offen sc1
    buffer_load_dwordx2 v[10:11], v2, {srd('WS')}, s70 offen offset:128 sc1
    buffer_load_dwordx2 v[12:13], v2, {srd('WS')}, s70 offen offset:1024 sc1
    buffer_load_dwordx2 v[14:15], v2, {srd('WS')}, s70 offen offset:1152 sc1
    """)
    for _ in range(4): vm.issue("st")
    acc = lambda ft, bt: 128 + 8*ft + 4*bt
    def hooks(kind, n):
        if kind == "step": vm.wait(("x", n))
        if kind == "ops" and n + LEAD < 20: return xload(n + LEAD)
        return None
    gemm_steps(g, 20, 7, None, lambda n, ft, h: (f"v{36 + n//8}", (n % 8)*7168 + ft*32 + h*3584), 40, acc,
               lambda n, bt: f"a[{8*n+4*bt}:{8*n+4*bt+3}]", hooks, lg)
    g.stamp()
    a(f"v_lshrrev_b32 v2, 4, v1\n v_lshlrev_b32 v2, 4, v2\n v_add_u32 v2, {LD_UT}, v2")
    for ft in range(7):
        a(f"ds_read_b128 v[{40+4*ft}:{43+4*ft}], v2 offset:{64*ft}\n ds_read_b128 v[{68+4*ft}:{71+4*ft}], v2 offset:{448+64*ft}")
    vm.wait("st")
    a("v_pk_add_f32 v[8:9], v[8:9], v[10:11]\n v_pk_add_f32 v[12:13], v[12:13], v[14:15]")
    for sw in ("v_permlane16_swap_b32", "v_permlane32_swap_b32"):
        a("v_mov_b32 v10, v8\n v_mov_b32 v11, v9\n v_mov_b32 v14, v12\n v_mov_b32 v15, v13\n s_nop 0")
        a(f"{sw} v10, v8\n {sw} v11, v9\n {sw} v14, v12\n {sw} v15, v13")
        a("v_pk_add_f32 v[8:9], v[8:9], v[10:11]\n v_pk_add_f32 v[12:13], v[12:13], v[14:15]")
    for bt in range(2):
        s1, s2 = 8 + 4*bt, 9 + 4*bt
        r, c = 16 + 4*bt, 18 + 4*bt
        a(f"""
        v_mul_f32 v{s1}, 0x3acccccd, v{s1}
        v_mul_f32 v{s2}, 0x3acccccd, v{s2}
        v_fma_f32 v{s2}, -v{s1}, v{s1}, v{s2}
        v_max_f32 v{s2}, 0, v{s2}
        v_add_f32 v{s2}, 0x3727c5ac, v{s2}
        v_rsq_f32 v{r}, v{s2}
        s_nop 0
        v_mul_f32 v{c}, v{s1}, v{r}
        v_sub_f32 v{c}, 0, v{c}
        v_mov_b32 v{r+1}, v{r}
        v_mov_b32 v{c+1}, v{c}
        """)
    a("s_waitcnt lgkmcnt(0)\n s_barrier")
    w2ops = w2_setup(g)
    for ft in range(7):
        for bt in range(2):
            d = acc(ft, bt); r, c = 16 + 4*bt, 18 + 4*bt
            for h in range(2):
                a(f"v_pk_fma_f32 v[24:25], v[{40+4*ft+2*h}:{41+4*ft+2*h}], v[{c}:{c+1}], v[{68+4*ft+2*h}:{69+4*ft+2*h}]")
                a(f"v_pk_fma_f32 v[{d+2*h}:{d+2*h+1}], v[{d+2*h}:{d+2*h+1}], v[{r}:{r+1}], v[24:25]")
            for k in range(4): a(f"v_max_f32 v{d+k}, 0, v{d+k}")
            for h in range(2): a(f"v_pk_mul_f32 v[{d+2*h}:{d+2*h+1}], v[{d+2*h}:{d+2*h+1}], v[{d+2*h}:{d+2*h+1}]")
            for h in range(2): a(f"v_cvt_pk_bf16_f32 v{96+14*bt+2*ft+h}, v{d+2*h}, v{d+2*h+1}")
    n = len(a.items)
    a(f"""
    s_lshr_b32 s70, s{sT0}, 1
    s_lshl_b32 s70, s70, 10
    s_mul_i32 s71, s74, 55296
    s_add_u32 s70, s70, s71
    s_add_u32 s72, s70, {G.OFF_H}
    s_add_u32 s73, s72, 55296
    s_cmp_eq_u32 s{sN6}, 1
    s_cselect_b32 s75, {OOB}, 0
    v_or_b32 v2, s75, v39
    s_cselect_b32 s75, 0, {OOB}
    v_or_b32 v3, s75, v39
    s_and_b32 s71, s{sT0}, 1
    s_cmp_eq_u32 s71, 0
    s_cbranch_scc0 L_DO{n}
    """)
    W = srd('WS')
    for bt in range(2):
        b = 96 + 14*bt
        a(f"""
        buffer_store_dwordx4 v[{b}:{b+3}], v39, {W}, s{72+bt} offen sc1
        buffer_store_dwordx4 v[{b+4}:{b+7}], v39, {W}, s{72+bt} offen offset:1024 sc1
        buffer_store_dwordx4 v[{b+8}:{b+11}], v39, {W}, s{72+bt} offen offset:2048 sc1
        buffer_store_dwordx2 v[{b+12}:{b+13}], v2, {W}, s{72+bt} offen offset:3072 sc1
        buffer_store_dwordx2 v[{b+12}:{b+13}], v2, {W}, s{72+bt} offen offset:3072 sc1
        """)
    a(f"s_branch L_DE{n}\n L_DO{n}:")
    for bt in range(2):
        b = 96 + 14*bt
        a(f"""
        buffer_store_dwordx2 v[{b}:{b+1}], v39, {W}, s{72+bt} offen offset:8 sc1
        buffer_store_dwordx4 v[{b+2}:{b+5}], v39, {W}, s{72+bt} offen offset:1024 sc1
        buffer_store_dwordx4 v[{b+6}:{b+9}], v39, {W}, s{72+bt} offen offset:2048 sc1
        buffer_store_dwordx4 v[{b+10}:{b+13}], v2, {W}, s{72+bt} offen offset:3072 sc1
        buffer_store_dwordx2 v[{b+10}:{b+11}], v3, {W}, s{72+bt} offen offset:3072 sc1
        """)
    a(f"L_DE{n}:")
    for _ in range(10): vm.issue("hs")
    npre = g.o.get("w2pre", 14)
    for op in w2ops[:npre]: a(op[0]); vm.issue(op[1])
    vm.wait("hs"); a("s_barrier")
    g.set_flag(f"s_lshl_b32 s70, s{sRB}, 7\n s_lshl_b32 s71, s{sJ}, 2\n s_add_u32 s70, s70, s71\n s_add_u32 s70, s70, {G.OFF_FLAGH}")
    for op in w2ops[npre:]: a(op[0]); vm.issue(op[1])
    g.stamp()

def w2_pair_ops(p):
    ops = []
    pre = f"""s_add_u32 s79, s{sRH}, {2*p}
    s_min_u32 s79, s79, 26
    s_mul_i32 s77, s79, {32*1280}
    s_add_u32 s77, s77, s76
    s_sub_u32 s78, s79, 14
    s_cmp_lt_u32 s79, 14
    s_cselect_b32 s78, s79, s78
    s_mul_i32 s78, s78, 5120
    s_add_u32 s78, s78, s69
    """
    for k in range(5):
        ops.append(((pre if k == 0 else "") + f"s_add_u32 m0, s78, {1024*k}\n s_nop 0\n buffer_load_dwordx4 v{200+k}, {srd('W2')}, s77 offen lds", ("w2", p)))
    return ops

def w2_setup(g):
    a = g.a
    a(f"s_mul_i32 s76, s{sCB}, 160")
    unit_patterns(g, 200, 5, 10, 6554, 1280, "s76")
    a(f"s_mul_i32 s76, s{sKH}, {27*32*1280}\n s_mul_i32 s69, s{sKH}, {14*5120}")
    ops = []
    for p in range(7): ops += w2_pair_ops(p)
    return ops

def phaseE(g):
    a, vm = g.a, g.vm
    lg = LGQ(a)
    a(f"""
    v_lshrrev_b32 v3, 4, v1
    v_lshlrev_b32 v4, 3, v3
    s_mul_i32 s71, s{sCB}, 160
    v_add_u32 v4, s71, v4
    v_lshlrev_b32 v3, 4, v3
    s_mul_i32 s71, s{sCB}, 320
    v_add_u32 v37, s71, v3
    s_mov_b32 s72, {G.OFF_MODV + 3200*4}
    """)
    for ft in range(5):
        a(f"buffer_load_dwordx4 v[{80+4*ft}:{83+4*ft}], v37, {srd('WS')}, s72 offen offset:{64*ft} sc1"); vm.issue("ee")
        a(f"buffer_load_dwordx2 v[{184+2*ft}:{185+2*ft}], v4, {srd('B2')}, 0 offen offset:{32*ft}"); vm.issue("ee")
    tr_addr(g, 36, 160)
    a(f"s_mul_i32 s70, s{sKH}, {14*5120}\n v_add_u32 v36, s70, v36\n v_add_u32 v35, {7*5120}, v36\n v_lshlrev_b32 v39, 4, v1")
    poll(g, 4, f"s_lshl_b32 s70, s{sRB}, 7\n s_add_u32 s70, s70, {G.OFF_FLAGH}", False, 0xE0)
    g.stamp()
    a(f"""
    s_mul_i32 s70, s{sKH}, {27*1024}
    s_add_u32 s70, s70, {G.OFF_H}
    s_mul_i32 s72, s{sRT}, 55296
    s_add_u32 s72, s72, s70
    s_xor_b32 s73, s{sRT}, 1
    s_mul_i32 s73, s73, 55296
    s_add_u32 s73, s73, s70
    """)
    def hload(n):
        ops = []
        for sl in range(2):
            post = "\n s_add_u32 s72, s72, 4096\n s_add_u32 s73, s73, 4096" if (n % 4 == 3 and sl == 1) else ""
            ops.append((f"buffer_load_dwordx4 a[{8*n+4*sl}:{8*n+4*sl+3}], v39, {srd('WS')}, s{72+sl} offen offset:{1024*(n%4)} sc1" + post, ("h", n)))
        return ops
    LEAD = g.o.get("elead", 8)
    for n in range(LEAD):
        for op in hload(n): a(op[0]); vm.issue(op[1])
    acc = lambda ft, bt: 128 + 8*ft + 4*bt
    def hooks(kind, n):
        if kind == "pre":
            vm.wait(("w2", 0)); a("s_barrier")
        if kind == "step":
            vm.wait(("h", n))
            if n % 2 == 1 and n + 1 < 27:
                vm.wait(("w2", (n + 1)//2)); a("s_barrier")
        if kind == "ops":
            ops = []
            if n + LEAD < 27: ops += hload(n + LEAD)
            if n % 2 == 1 and (n + 1)//2 + 6 <= 13: ops += w2_pair_ops((n + 1)//2 + 6)
            return ops
        return None
    def aoff(n, ft, h):
        sl = n % 14
        return ("v36" if sl < 7 else "v35", (sl % 7)*5120 + ft*32 + h*2560)
    gemm_steps(g, 27, 5, None, aoff, 40, acc, lambda n, bt: f"a[{8*n+4*bt}:{8*n+4*bt+3}]", hooks, lg)
    g.stamp()
    exchange(g, acc)
    vm.wait("ee")
    for ft in range(5):
        d = acc(ft, 0)
        g.lo(8, 184+2*ft); g.hi(9, 184+2*ft); g.lo(10, 185+2*ft); g.hi(11, 185+2*ft)
        for h in range(2):
            a(f"v_pk_add_f32 v[{d+2*h}:{d+2*h+1}], v[{d+2*h}:{d+2*h+1}], v[{8+2*h}:{9+2*h}]")
            a(f"v_pk_fma_f32 v[{d+2*h}:{d+2*h+1}], v[{d+2*h}:{d+2*h+1}], v[{80+4*ft+2*h}:{81+4*ft+2*h}], v[{X1+4*ft+2*h}:{X1+4*ft+2*h+1}]")
        a(f"v_cvt_pk_bf16_f32 v{20+2*ft}, v{d}, v{d+1}\n v_cvt_pk_bf16_f32 v{21+2*ft}, v{d+2}, v{d+3}")
    a(f"""
    v_and_b32 v2, 15, v1
    s_lshl_b32 s70, s{sRT}, 4
    v_add_u32 v2, s70, v2
    v_mul_u32_u24 v2, 1280, v2
    v_lshrrev_b32 v3, 4, v1
    s_mul_i32 s71, s{sCB}, 160
    v_lshl_add_u32 v2, v3, 3, v2
    v_add_u32 v2, s71, v2
    """)
    for ft in range(5):
        a(f"buffer_store_dwordx2 v[{20+2*ft}:{21+2*ft}], v2, {srd('OUT')}, 0 offen offset:{32*ft}"); vm.issue("out")
    n = len(a.items)
    a(f"""
    s_cmp_lg_u32 s2, 0
    s_cbranch_scc1 L_NE{n}
    s_cmp_lg_u32 s{sW}, 0
    s_cbranch_scc1 L_NE{n}
    v_mov_b32 v2, s{sNONCE}
    v_mov_b32 v3, 0
    s_mov_b32 s70, {G.OFF_EPOCH}
    s_mov_b64 exec, 1
    buffer_store_dword v2, v3, {srd('WS')}, s70 offen sc1
    s_mov_b64 exec, -1
    L_NE{n}:
    """)
    g.stamp()

def rest(g):
    stop = g.o.get("stop", "")
    phaseC(g)
    if stop == "C": return
    phaseD(g)
    if stop == "D": return
    phaseE(g)
```

```python
from asmlib import LGQ
import gen as G
from gen import srd, OOB, sNONCE, sRB, sJ, sW, sL2E, SRD

SPIN = 1 << 20

def poll(g, nlanes_log, addr_code, wide, code):
    a = g.a
    n = len(a.items)
    a(f"s_cmp_lg_u32 s{sW}, 0\n s_cbranch_scc1 L_PD{n}")
    a(addr_code)
    a(f"s_mov_b32 s71, {SPIN}")
    if wide:
        a("v_lshlrev_b32 v2, 4, v1")
    else:
        a(f"v_and_b32 v2, {(1 << nlanes_log) - 1}, v1\n v_lshlrev_b32 v2, 2, v2")
    a(f"L_PL{n}:")
    if wide:
        a(f"""
        buffer_load_dwordx4 v[4:7], v2, {srd('WS')}, s70 offen sc1
        s_waitcnt vmcnt(0)
        v_xor_b32 v4, s{sNONCE}, v4
        v_xor_b32 v5, s{sNONCE}, v5
        v_xor_b32 v6, s{sNONCE}, v6
        v_xor_b32 v7, s{sNONCE}, v7
        v_or_b32 v4, v4, v5
        v_or_b32 v6, v6, v7
        v_or_b32 v4, v4, v6
        v_cmp_ne_u32 vcc, 0, v4
        """)
    else:
        a(f"""
        buffer_load_dword v4, v2, {srd('WS')}, s70 offen sc1
        s_waitcnt vmcnt(0)
        v_cmp_ne_u32 vcc, s{sNONCE}, v4
        """)
    a(f"""
    s_sub_u32 s71, s71, 1
    s_cmp_eq_u32 s71, 0
    s_cbranch_scc1 L_PT{n}
    s_cbranch_vccnz L_PL{n}
    s_branch L_PD{n}
    L_PT{n}:
    v_mov_b32 v4, {code}
    v_mov_b32 v5, 0
    buffer_store_dword v4, v5, {srd('DBG')}, 0 offen
    s_waitcnt vmcnt(0)
    L_PD{n}:
    s_barrier
    """)

XF = 0
PHIF = 160
ACC = 64
AB = 40
TVR = 128
PP = 192
PHQ = 224

def softmax_pm(g, dst):
    a = g.a
    P = PP; EP = 128; EM = 148
    a(f"v_max3_f32 v2, v{P}, v{P+1}, v{P+2}\n v_min3_f32 v3, v{P}, v{P+1}, v{P+2}")
    for k in range(3, 19, 2):
        a(f"v_max3_f32 v2, v2, v{P+k}, v{P+k+1}\n v_min3_f32 v3, v3, v{P+k}, v{P+k+1}")
    a(f"v_max_f32 v2, v2, v{P+19}\n v_min_f32 v3, v3, v{P+19}")
    a(f"v_mul_f32 v4, s{sL2E}, v2\n v_mul_f32 v6, s{sL2E}, v3\n v_sub_f32 v4, 0, v4\n v_mov_b32 v7, v6\n v_mov_b32 v5, v4")
    for k in range(0, 20, 2):
        a(f"v_pk_fma_f32 v[{EP+k}:{EP+k+1}], v[{P+k}:{P+k+1}], s[{sL2E}:{sL2E+1}], v[4:5]")
        a(f"v_pk_fma_f32 v[{EM+k}:{EM+k+1}], v[{P+k}:{P+k+1}], s[{sL2E}:{sL2E+1}], v[6:7] neg_lo:[1,0,0] neg_hi:[1,0,0]")
    for k in range(20):
        a(f"v_exp_f32 v{EP+k}, v{EP+k}\n v_exp_f32 v{EM+k}, v{EM+k}")
    a(f"v_pk_add_f32 v[8:9], v[{EP}:{EP+1}], v[{EP+2}:{EP+3}]\n v_pk_add_f32 v[10:11], v[{EM}:{EM+1}], v[{EM+2}:{EM+3}]")
    for k in range(4, 20, 2):
        a(f"v_pk_add_f32 v[8:9], v[8:9], v[{EP+k}:{EP+k+1}]\n v_pk_add_f32 v[10:11], v[10:11], v[{EM+k}:{EM+k+1}]")
    a("v_add_f32 v8, v8, v9\n v_add_f32 v10, v10, v11\n v_rcp_f32 v8, v8\n v_rcp_f32 v10, v10\n s_nop 0\n v_mov_b32 v9, v8\n v_mov_b32 v11, v10")
    for k in range(0, 20, 2):
        a(f"v_pk_mul_f32 v[{EP+k}:{EP+k+1}], v[{EP+k}:{EP+k+1}], v[8:9]")
        a(f"v_pk_mul_f32 v[{EM+k}:{EM+k+1}], v[{EM+k}:{EM+k+1}], v[10:11]")
    for k in range(10):
        a(f"v_cvt_pk_bf16_f32 v{dst+k}, v{EP+2*k}, v{EP+2*k+1}")
    for k in range(10):
        a(f"v_cvt_pk_bf16_f32 v{dst+10+k}, v{EM+2*k}, v{EM+2*k+1}")

def project(g, src):
    a = g.a
    for k in range(10):
        a(f"v_cvt_pk_bf16_f32 v{12+k}, v{src[2*k]}, v{src[2*k+1]}")
    a("v_mov_b32 v22, 0\n v_mov_b32 v23, 0")
    for p in range(2):
        for u in range(3):
            c = "0" if u == 0 else f"v[{PP+16*p}:{PP+16*p+15}]"
            f = PHIF + 4*(3*p + u)
            a(f"v_mfma_f32_32x32x16_bf16 v[{PP+16*p}:{PP+16*p+15}], a[{f}:{f+3}], v[{12+4*u}:{15+4*u}], {c}")

def phaseB(g):
    a, vm, o = g.a, g.vm, g.o
    lg = LGQ(a)
    a(f"""
    v_lshrrev_b32 v2, 5, v1                 ; khalf
    v_bfe_u32 v3, v1, 2, 2                  ; r
    v_bfe_u32 v4, v1, 4, 1
    v_and_b32 v5, 3, v1
    v_lshl_add_u32 v4, v4, 2, v5            ; cc
    v_and_b32 v5, 1, v4                     ; hh
    v_lshrrev_b32 v4, 1, v4                 ; i
    v_mul_u32_u24 v6, 800, v5
    v_mul_u32_u24 v7, 40, v3
    v_lshlrev_b32 v8, 3, v4
    v_add3_u32 v6, v6, v7, v8
    v_add_u32 v6, {G.LM_WPHI}, v6
    v_mov_b32 v7, {G.LM_ZERO}
    v_cmp_eq_u32 vcc, v2, v5
    v_cndmask_b32 v8, v7, v6, vcc           ; p = 0 address
    v_cmp_eq_u32 vcc, 0, v4
    v_cndmask_b32 v9, v7, v8, vcc
    """)
    for p in range(2):
        for u in range(3):
            f = PHIF + 4*(3*p + u)
            a(f"ds_read_b64_tr_b16 a[{f}:{f+1}], v{8+p} offset:{320*u + 32*p}")
            if u < 2: a(f"ds_read_b64_tr_b16 a[{f+2}:{f+3}], v{8+p} offset:{320*u + 160 + 32*p}")
            else: a(f"v_accvgpr_write_b32 a{f+2}, 0\n v_accvgpr_write_b32 a{f+3}, 0")
    n = len(a.items)
    if o.get("warm", 1):
        a(f"""
        s_cmp_eq_u32 s{sW}, 0
        s_cbranch_scc1 L_NW{n}
        s_mul_i32 s70, s2, 3
        s_add_u32 s70, s70, s{sW}
        s_sub_u32 s70, s70, 1
        s_lshl_b32 s70, s70, 10
        v_lshlrev_b32 v2, 4, v1
        v_add_u32 v2, s70, v2
        """)
        k = 0
        for nm, cnt in (("WO", 2), ("W1", 3), ("W2", 3)):
            for i in range(cnt):
                a(f"s_mov_b32 s71, {i*768*1024}\n buffer_load_dwordx4 v[{200+4*k}:{203+4*k}], v2, {srd(nm)}, s71 offen"); k += 1
        a(f"L_NW{n}:")
    a("s_waitcnt lgkmcnt(0)")
    poll(g, 8, f"s_mov_b32 s70, {G.OFF_FLAGA}", True, 0xA0)
    g.stamp()
    a(f"""
    v_lshlrev_b32 v39, 4, v1                ; l*16
    s_lshl_b32 s70, s{sRB}, 2
    s_add_u32 s70, s70, s{sW}
    s_mul_i32 s70, s70, 40960
    s_add_u32 s72, s70, {G.OFF_XH}
    s_mul_i32 s70, s{sJ}, {G.WP_STRIDE}
    s_add_u32 s74, s70, {G.OFF_WP}
    s_mul_i32 s70, s{sW}, 3072
    s_add_u32 s73, s74, s70
    s_mov_b32 s75, s70
    """)
    def chunk_ops(c):
        ops = []
        for k in range(4):
            st = 4*c + k
            ops.append((f"buffer_load_dwordx4 a[{XF+4*st}:{XF+4*st+3}], v39, {srd('WS')}, s72 offen offset:{1024*k} sc1", ("c", c)))
        pre = f"s_mov_b32 m0, s75\n s_nop 0\n"
        for k in range(3):
            ops.append(((pre if k == 0 else "") + f"buffer_load_dwordx4 v39, {srd('WS')}, s73 offen offset:{1024*k} sc1 lds", ("c", c)))
        ops.append(("s_add_u32 s72, s72, 4096\n s_add_u32 s73, s73, 12288\n s_add_u32 s75, s75, 12288", None))
        return ops
    def emit_op(op):
        a(op[0])
        if op[1] is not None: vm.issue(op[1])
    for c in range(3):
        for op in chunk_ops(c): emit_op(op)
    a(f"""
    v_and_b32 v2, 31, v0
    v_lshrrev_b32 v3, 5, v0
    v_mul_u32_u24 v3, 2560, v3
    v_lshl_add_u32 v3, v2, 4, v3
    s_mul_i32 s70, s{sJ}, 20480
    s_add_u32 s70, s70, {G.OFF_TPART}
    """)
    for k in range(5):
        a(f"buffer_load_dwordx4 v[{8+4*k}:{11+4*k}], v3, {srd('WS')}, s70 offen offset:{512*k} sc1"); vm.issue("tp")
    pend = []
    a("v_add_u32 v38, 0x10000, v39")
    PF = 4
    def aread(n):
        base = "v39" if n < 64 else "v38"
        s = AB + 4*(n % 6)
        a(f"ds_read_b128 v[{s}:{s+3}], {base} offset:{(n % 64)*1024}"); lg.issue(("a", n))
    vm.wait(("c", 0)); a("s_barrier")
    for n in range(PF): aread(n)
    for n in range(120):
        c = n // 12
        if n % 12 == 0 and c + 3 < 10: pend = chunk_ops(c + 3)
        if n == 12*7:
            pend = []
            for k in range(8):
                pend.append((f"s_lshl_b32 s70, s{sW}, 3\n s_add_u32 s70, s70, {k}\n s_min_u32 s70, s70, 29\n s_lshl_b32 s70, s70, 10\n s_add_u32 s71, s70, s74\n s_add_u32 s71, s71, 122880\n s_add_u32 m0, s70, 122880\n s_nop 0\n buffer_load_dwordx4 v39, {srd('WS')}, s71 offen sc1 lds", "t3"))
        m = n + PF
        if m < 120:
            if m % 12 == 0:
                vm.wait(("c", m // 12)); a("s_barrier")
            aread(m)
        if n == 14:
            vm.wait("tp")
            for k in range(1, 5):
                a(f"v_pk_add_f32 v[8:9], v[8:9], v[{8+4*k}:{9+4*k}]\n v_pk_add_f32 v[10:11], v[10:11], v[{10+4*k}:{11+4*k}]")
            a("v_mov_b32 v12, v8\n v_mov_b32 v13, v9\n v_mov_b32 v14, v10\n v_mov_b32 v15, v11\n s_nop 0")
            for k in range(4): a(f"v_permlane32_swap_b32 v{12+k}, v{8+k}")
            a("v_pk_add_f32 v[8:9], v[8:9], v[12:13]\n v_pk_add_f32 v[10:11], v[10:11], v[14:15]")
            a(f"""
            v_and_b32 v2, 31, v1
            v_and_b32 v3, 1, v2
            v_lshrrev_b32 v4, 1, v2
            v_lshlrev_b32 v3, 8, v3
            v_lshl_add_u32 v3, v4, 4, v3
            s_lshl_b32 s70, s{sW}, 9
            v_add_u32 v3, s70, v3
            v_add_u32 v3, {G.LM_TP}, v3
            ds_write_b128 v3, v[8:11]
            """); lg.issue("tpw")
        if n == 30:
            a(f"v_and_b32 v2, 31, v1\n v_lshlrev_b32 v2, 4, v2\n v_add_u32 v3, {G.LM_TP}, v2")
            for k in range(4):
                a(f"ds_read_b128 v[{8+4*k}:{11+4*k}], v3 offset:{512*k}"); lg.issue("tpr")
        if n == 34:
            lg.wait("tpr")
            a("v_pk_add_f32 v[8:9], v[8:9], v[12:13]\n v_pk_add_f32 v[10:11], v[10:11], v[14:15]\n v_pk_add_f32 v[16:17], v[16:17], v[20:21]\n v_pk_add_f32 v[18:19], v[18:19], v[22:23]\n v_pk_add_f32 v[8:9], v[8:9], v[16:17]\n v_pk_add_f32 v[10:11], v[10:11], v[18:19]")
            a(f"s_lshl_b32 s70, s{sW}, 9\n v_add_u32 v2, s70, v2\n v_add_u32 v2, {G.LM_TV}, v2\n ds_write_b128 v2, v[8:11]"); lg.issue("tvw")
        if n == 23:
            lg.wait("tpw")
        lg.wait(("a", n))
        st, t = n // 3, n % 3
        s = AB + 4*(n % 6)
        acc = f"v[{ACC+16*t}:{ACC+16*t+15}]"
        a(f"v_mfma_f32_32x32x16_bf16 {acc}, v[{s}:{s+3}], a[{XF+4*st}:{XF+4*st+3}], {acc if st else '0'}")
        if pend: emit_op(pend.pop(0))
    assert not pend
    g.stamp()
    a(f"""
    v_lshrrev_b32 v2, 5, v1
    v_lshlrev_b32 v2, 8, v2
    s_lshl_b32 s70, s{sW}, 9
    v_add_u32 v2, s70, v2
    v_add_u32 v2, {G.LM_TV}, v2
    """)
    lg.wait("tvw")
    for s in range(15):
        a(f"ds_read_b128 v[{TVR+4*s}:{TVR+4*s+3}], v2 offset:{16*s}"); lg.issue("tv")
    a("s_barrier")
    lg.drain()
    for s in range(10):
        for h in range(2):
            r = ACC + 4*s + 2*h
            a(f"v_pk_add_f32 v[{r}:{r+1}], v[{r}:{r+1}], v[{TVR+4*s+2*h}:{TVR+4*s+2*h+1}]")
    for k in range(20): a(f"v_accvgpr_write_b32 a{184+k}, v{TVR+40+k}")
    project(g, [ACC+k for k in range(20)])
    for k in range(10): a(f"v_cvt_pk_bf16_f32 v{24+k}, v{ACC+20+2*k}, v{ACC+21+2*k}")
    a("v_mov_b32 v34, 0x3f80\n v_mov_b32 v35, 0")
    a(f"""
    v_and_b32 v2, 31, v1
    s_lshl_b32 s70, s{sW}, 5
    v_add_u32 v2, s70, v2
    v_lshrrev_b32 v3, 5, v1
    v_lshl_add_u32 v2, v3, 7, v2
    v_mul_u32_u24 v36, 80, v2
    v_mul_u32_u24 v37, 48, v2
    v_add_u32 v37, 20480, v37               ; v address
    ds_write_b128 v37, v[24:27]
    ds_write_b128 v37, v[28:31] offset:16
    ds_write_b128 v37, v[32:35] offset:32
    """)
    softmax_pm(g, PHQ)
    for k in range(5): a(f"ds_write_b128 v36, v[{PHQ+4*k}:{PHQ+4*k+3}] offset:{16*k}")
    a(f"""
    s_lshr_b32 s70, s{sW}, 1                ; head
    s_and_b32 s71, s{sW}, 1                 ; ftile
    v_lshrrev_b32 v2, 5, v1                 ; khalf
    v_bfe_u32 v3, v1, 2, 2                  ; r
    v_lshl_add_u32 v2, v2, 3, v3
    v_bfe_u32 v4, v1, 4, 1
    v_and_b32 v5, 3, v1                     ; c
    v_lshl_add_u32 v6, v4, 2, v5            ; cc
    v_and_b32 v7, 1, v6                     ; hh
    v_lshrrev_b32 v6, 1, v6                 ; i
    v_lshrrev_b32 v8, 1, v6
    v_lshlrev_b32 v8, 2, v8
    v_lshl_add_u32 v8, v7, 1, v8
    v_and_b32 v6, 1, v6
    v_add_u32 v8, v8, v6
    v_mul_u32_u24 v9, 80, v2
    v_lshl_add_u32 v9, v8, 3, v9
    s_mul_i32 s72, s70, 10240
    s_lshl_b32 s73, s71, 6
    s_add_u32 s72, s72, s73
    v_add_u32 v9, s72, v9                   ; A address
    v_mul_u32_u24 v10, 48, v2
    v_lshl_add_u32 v10, v4, 5, v10
    v_lshl_add_u32 v10, v5, 3, v10
    s_mul_i32 s72, s70, 6144
    s_add_u32 s72, s72, 20480
    v_add_u32 v10, s72, v10                 ; B address
    s_waitcnt lgkmcnt(0)
    s_barrier
    """)
    for st in range(8):
        a(f"ds_read_b64_tr_b16 v[{128+8*st}:{129+8*st}], v9 offset:{1280*st}\n ds_read_b64_tr_b16 v[{130+8*st}:{131+8*st}], v9 offset:{1280*st+320}")
        a(f"ds_read_b64_tr_b16 v[{132+8*st}:{133+8*st}], v10 offset:{768*st}\n ds_read_b64_tr_b16 v[{134+8*st}:{135+8*st}], v10 offset:{768*st+192}")
    a(f"""
    v_and_b32 v2, 31, v1                    ; d
    v_lshrrev_b32 v3, 5, v1                 ; hh
    v_mul_u32_u24 v4, 80, v2
    v_lshl_add_u32 v4, v3, 4, v4
    s_mul_i32 s72, s70, 1680
    s_lshl_b32 s73, s71, 6
    s_add_u32 s72, s72, s73
    v_add_u32 v4, s72, v4
    v_mov_b32 v5, {OOB}
    v_cmp_gt_u32 vcc, 21, v2
    v_cndmask_b32 v4, v5, v4, vcc
    v_add_u32 v6, 32, v4
    v_mul_u32_u24 v7, s71, v3               ; ftile*hh
    v_cmp_eq_u32 vcc, 0, v7
    v_cndmask_b32 v4, v5, v4, vcc
    s_cmp_eq_u32 s71, 0
    s_cselect_b32 s72, 0, {OOB}
    v_or_b32 v6, s72, v6
    s_lshl_b32 s72, s{sJ}, 4
    s_add_u32 s72, s72, s{sRB}
    s_mul_i32 s72, s72, {G.KVP_STRIDE}
    s_add_u32 s72, s72, {G.OFF_KVP}
    """)
    for st in range(8):
        a(f"s_waitcnt lgkmcnt({min(15, 4*(7-st))})")
        c = "0" if st == 0 else f"v[{PP}:{PP+15}]"
        a(f"v_mfma_f32_32x32x16_bf16 v[{PP}:{PP+15}], v[{128+8*st}:{131+8*st}], v[{132+8*st}:{135+8*st}], {c}")
    for k in range(8): a(f"v_cvt_pk_bf16_f32 v{8+k}, v{PP+2*k}, v{PP+2*k+1}")
    a(f"buffer_store_dwordx4 v[8:11], v4, {srd('WS')}, s72 offen sc1"); vm.issue("kvs")
    a(f"buffer_store_dwordx4 v[12:15], v6, {srd('WS')}, s72 offen sc1"); vm.issue("kvs")
    vm.wait("kvs"); a("s_barrier")
    g.set_flag(f"s_lshl_b32 s70, s{sJ}, 7\n s_lshl_b32 s71, s{sRB}, 2\n s_add_u32 s70, s70, s71\n s_add_u32 s70, s70, {G.OFF_FLAGKV}")
    g.stamp()
    wo_ops = wo_dma_ops(g)
    a(f"""
    v_and_b32 v2, 31, v1
    v_subrev_u32 v3, 8, v2
    v_cmp_gt_u32 vcc, 24, v2
    v_cndmask_b32 v2, v3, v2, vcc
    v_lshrrev_b32 v3, 5, v1
    v_mul_u32_u24 v3, 384, v3
    v_lshl_add_u32 v2, v2, 4, v3
    v_add_u32 v38, 122880, v2
    """)
    def aread3(n):
        s = AB + 4*(n % 6)
        a(f"ds_read_b128 v[{s}:{s+3}], v38 offset:{768*n}"); lg.issue(("q", n))
    for n in range(PF): aread3(n)
    for n in range(40):
        if n + PF < 40: aread3(n + PF)
        lg.wait(("q", n))
        s = AB + 4*(n % 6)
        acc = f"v[{ACC+48}:{ACC+63}]"
        a(f"v_mfma_f32_32x32x16_bf16 {acc}, v[{s}:{s+3}], a[{XF+4*n}:{XF+4*n+3}], {acc if n else '0'}")
        if n % 2 == 1 and wo_ops: emit_op(wo_ops.pop(0))
    while wo_ops: emit_op(wo_ops.pop(0))
    for k in range(20): a(f"v_accvgpr_read_b32 v{TVR+k}, a{184+k}")
    for s in range(5):
        for h in range(2):
            r = ACC + 40 + 4*s + 2*h
            a(f"v_pk_add_f32 v[{r}:{r+1}], v[{r}:{r+1}], v[{TVR+4*s+2*h}:{TVR+4*s+2*h+1}]")
    project(g, [ACC+40+k for k in range(20)])
    softmax_pm(g, PHQ)
    g.stamp()
    poll(g, 4, f"s_lshl_b32 s70, s{sJ}, 7\n s_add_u32 s70, s70, {G.OFF_FLAGKV}", False, 0xB0)
    a(f"""
    v_min_u32 v2, 209, v0
    v_lshlrev_b32 v3, 4, v2
    s_lshl_b32 s70, s{sJ}, 4
    s_mul_i32 s70, s70, {G.KVP_STRIDE}
    s_add_u32 s70, s70, {G.OFF_KVP}
    """)
    for k in range(16):
        a(f"buffer_load_dwordx4 v[{128+4*k}:{131+4*k}], v3, {srd('WS')}, s70 offen sc1"); vm.issue(("kv", k))
        if k < 15: a(f"s_add_u32 s70, s70, {G.KVP_STRIDE}")
    a(f"""
    v_cmp_lt_u32 vcc, 104, v2
    v_mov_b32 v4, 240
    v_cndmask_b32 v4, 0, v4, vcc
    v_add_u32 v3, v3, v4
    """)
    a(f"v_add_u32 v3, {G.LM_KVT}, v3\n s_mov_b32 s71, 0x3f80\n s_mov_b32 s72, 0x3f800000")
    for k in range(16):
        vm.wait(("kv", k))
        for d in range(4):
            if k == 0:
                a(f"v_lshlrev_b32 v{8+2*d}, 16, v{128+d}\n v_and_b32 v{9+2*d}, 0xffff0000, v{128+d}")
            else:
                a(f"v_dot2_f32_bf16 v{8+2*d}, v{128+4*k+d}, s71, v{8+2*d}\n v_dot2_f32_bf16 v{9+2*d}, v{128+4*k+d}, s72, v{9+2*d}")
    for d in range(4): a(f"v_cvt_pk_bf16_f32 v{16+d}, v{8+2*d}, v{9+2*d}")
    a("ds_write_b128 v3, v[16:19]")
    a(f"""
    v_lshrrev_b32 v2, 5, v1                 ; khalf
    v_bfe_u32 v3, v1, 2, 1                  ; hh
    v_bfe_u32 v4, v1, 3, 2                  ; i
    v_and_b32 v5, 3, v1                     ; j
    v_add_u32 v6, v4, v3
    v_lshl_add_u32 v6, v6, 2, v5
    v_cmp_eq_u32 vcc, 0, v3
    v_mov_b32 v7, 4
    v_cndmask_b32 v7, 0, v7, vcc
    v_cmp_eq_u32 vcc, 0, v4
    v_mov_b32 v8, 5
    v_cndmask_b32 v7, v8, v7, vcc
    v_lshl_add_u32 v7, v7, 2, v5
    v_mul_u32_u24 v8, 1920, v3
    v_add_u32 v8, {G.LM_KVT}, v8
    v_mul_u32_u24 v6, 80, v6
    v_mul_u32_u24 v7, 80, v7
    v_add_u32 v6, v6, v8
    v_add_u32 v7, v7, v8
    v_mov_b32 v9, {G.LM_ZERO}
    v_cmp_eq_u32 vcc, v2, v3
    v_cndmask_b32 v6, v9, v6, vcc
    v_cndmask_b32 v7, v9, v7, vcc
    s_waitcnt lgkmcnt(0)
    s_barrier
    """)
    for p in range(2):
        for u in range(5):
            a(f"ds_read_b128 v[{128+20*p+4*u}:{131+20*p+4*u}], v{6+p} offset:{16*u}")
    a("s_waitcnt lgkmcnt(0)")
    for u in range(5):
        for p in range(2):
            c = "0" if u == 0 else f"v[{PP+16*p}:{PP+16*p+15}]"
            a(f"v_mfma_f32_32x32x16_bf16 v[{PP+16*p}:{PP+16*p+15}], v[{128+20*p+4*u}:{131+20*p+4*u}], v[{PHQ+4*u}:{PHQ+4*u+3}], {c}")
    a(f"""
    v_and_b32 v2, 15, v1                    ; s16
    v_bfe_u32 v3, v1, 4, 1                  ; bt
    v_lshrrev_b32 v4, 5, v1                 ; hh
    v_mul_u32_u24 v5, 20480, v3
    v_lshl_add_u32 v5, v2, 4, v5            ; bt*20480 + s16*16
    v_mul_u32_u24 v6, 768, v4
    v_add_u32 v6, v6, v5
    v_lshl_add_u32 v7, v4, 3, v5
    v_add_u32 v7, 512, v7
    s_lshl_b32 s70, s{sRB}, 3
    s_lshl_b32 s71, s{sW}, 1
    s_add_u32 s70, s70, s71
    s_mul_i32 s70, s70, 20480
    s_mul_i32 s71, s{sJ}, 1280
    s_add_u32 s70, s70, s71
    s_add_u32 s70, s70, {G.OFF_O}
    """)
    a(f"v_add_f32 v8, 0x358637bd, v{PP+20}\n v_rcp_f32 v8, v8\n s_nop 0\n v_mov_b32 v9, v8")
    for k in range(0, 20, 2): a(f"v_pk_mul_f32 v[{PP+k}:{PP+k+1}], v[{PP+k}:{PP+k+1}], v[8:9]")
    for k in range(10): a(f"v_cvt_pk_bf16_f32 v{12+k}, v{PP+2*k}, v{PP+2*k+1}")
    a(f"buffer_store_dwordx4 v[12:15], v6, {srd('WS')}, s70 offen sc1"); vm.issue("os")
    a(f"buffer_store_dwordx4 v[16:19], v6, {srd('WS')}, s70 offen offset:256 sc1"); vm.issue("os")
    a(f"buffer_store_dwordx2 v[20:21], v7, {srd('WS')}, s70 offen sc1"); vm.issue("os")
    vm.drain(); a("s_barrier")
    g.set_flag(f"s_lshl_b32 s70, s{sRB}, 7\n s_lshl_b32 s71, s{sJ}, 2\n s_add_u32 s70, s70, s71\n s_add_u32 s70, s70, {G.OFF_FLAGO}")
    g.stamp()

def wo_dma_ops(g):
    a = g.a
    a(f"s_lshr_b32 s76, s{sJ}, 1\n s_mul_i32 s76, s76, 160")
    for k in range(5):
        a(f"""
        v_add_u32 v2, {64*k}, v1
        v_mul_u32_u24 v3, 6554, v2
        v_lshrrev_b32 v3, 16, v3
        v_mul_u32_u24 v4, 10, v3
        v_sub_u32 v4, v2, v4                  ; piece
        v_bfe_u32 v5, v3, 2, 2
        v_lshlrev_b32 v5, 3, v5
        v_lshrrev_b32 v6, 4, v3
        v_lshl_add_u32 v5, v6, 2, v5
        v_and_b32 v6, 3, v3
        v_add_u32 v5, v5, v6
        v_mul_u32_u24 v5, 1280, v5
        v_lshl_add_u32 v5, v4, 4, v5
        v_add_u32 v{200+k}, s76, v5
        """)
    a(f"s_mul_i32 s77, s{sW}, {5*32*1280}\n s_mul_i32 s78, s{sW}, {5*5120}")
    ops = []
    for st in range(5):
        for k in range(5):
            pre = f"s_add_u32 m0, s78, {st*5120 + k*1024}\n s_nop 0\n"
            post = f"\n s_add_u32 s77, s77, {32*1280}" if k == 4 else ""
            ops.append((pre + f"buffer_load_dwordx4 v{200+k}, {srd('WO')}, s77 offen lds" + post, "wo"))
    return ops

def rest(g):
    stop = g.o.get("stop", "")
    phaseB(g)
    if stop == "B": return
    import gen_cde
    gen_cde.rest(g)
```

```python
import sys
from asmlib import Asm, VMQ

NAME = "adaLN_cond__linear_kernel_hedgehog__dense_activation_squared_relu__prompt"

def _al(x, a=4096): return (x + a - 1) // a * a
OFF_EPOCH = 0
OFF_FLAGA = 1024
OFF_FLAGKV = 2048
OFF_FLAGO = 4096
OFF_FLAGX = 6144
OFF_FLAGH = 8192
OFF_MODV = 16384
OFF_TPART = 32768
OFF_STATS = _al(OFF_TPART + 16 * 40 * 128 * 4)
OFF_KVP = _al(OFF_STATS + 128 * 8 * 16 * 8)
KVP_STRIDE = 3584
OFF_WP = _al(OFF_KVP + 256 * KVP_STRIDE)
WP_STRIDE = 153600
OFF_XH = _al(OFF_WP + 16 * WP_STRIDE)
OFF_O = _al(OFF_XH + 2048 * 1280)
OFF_X1S = _al(OFF_O + 2048 * 1280)
OFF_H = _al(OFF_X1S + 2048 * 1280)
WS_END = _al(OFF_H + 2048 * 1728 * 2)
WS_BYTES = 268435456

SRD = dict(X=4, W=8, PHI=12, WO=16, W1=20, B1=24, W2=28, B2=32, C=36, WM=40, OUT=44, WS=48, DBG=52)
def srd(n): return f"s[{SRD[n]}:{SRD[n]+3}]"
sNONCE, sRB, sJ, sW, sXCD, sI = 56, 57, 58, 59, 60, 61
sSTEP, sHPG, sCOLA, sCOLB, sTYPE = 62, 63, 64, 65, 66
sL2E = 68
sT0 = 70
OOB = 0x7fff0000
NONCE_STEP = 0x9E3779B9
LOG2E = 0x3FB8AA3B

LA_SLAB, LA_WSL, LA_SILU, LA_PART, LA_LNP = 0, 40960, 57344, 59392, 59904
LM_WPHI, LM_ZERO, LM_TV, LM_KVT = 153600, 155648, 156416, 158464
LM_TP = LM_KVT
LDS_BYTES = 163840

class Gen:
    def __init__(self, opt):
        self.o = opt
        self.a = Asm()
        self.vm = VMQ(self.a)
        self.nstamp = 0

    def lo(self, d, s): self.a(f"v_lshlrev_b32 v{d}, 16, v{s}")
    def hi(self, d, s): self.a(f"v_and_b32 v{d}, 0xffff0000, v{s}")
    def stamp(self):
        if not self.o.get("stamps"): return
        k = self.nstamp; self.nstamp += 1
        assert k < 11
        self.a(f"s_memrealtime s[{80+2*k}:{81+2*k}]" if self.o.get("stamps") == "rt" else f"s_memtime s[{80+2*k}:{81+2*k}]")
        self.a("s_waitcnt lgkmcnt(0)")

    def prologue(self):
        a = self.a
        a(f"""
        s_cmp_ge_u32 s2, 256
        s_cbranch_scc1 L_END
        s_load_dwordx16 s[64:79], s[0:1], 0
        s_load_dwordx8 s[80:87], s[0:1], 64
        s_load_dwordx4 s[88:91], s[0:1], 96
        v_and_b32 v1, 63, v0
        v_lshrrev_b32 v2, 6, v0
        s_and_b32 s{sXCD}, s2, 7
        s_lshr_b32 s{sI}, s2, 3
        v_readfirstlane_b32 s{sW}, v2
        s_lshr_b32 s{sRB}, s{sI}, 4
        s_lshl_b32 s3, s{sXCD}, 1
        s_add_u32 s{sRB}, s{sRB}, s3
        s_and_b32 s{sJ}, s{sI}, 15
        s_waitcnt lgkmcnt(0)
        """)
        ptr = dict(X=64, W=66, PHI=68, WO=70, W1=74, B1=76, W2=78, B2=80, C=82, WM=84, OUT=86, DBG=88, WS=90)
        size = dict(X=2048*1280, W=640*3840, PHI=32*800, WO=640*1280, W1=640*3456, B1=3456, W2=1728*1280, B2=1280,
                    C=1280, WM=640*7680, OUT=2048*1280, DBG=256, WS=WS_BYTES)
        a(f"s_load_dword s{sNONCE}, s[90:91], {self.o['wsbase'] + OFF_EPOCH}" if self.o['wsbase'] < (1 << 20) else
          f"s_add_u32 s92, s90, {self.o['wsbase']}\n s_addc_u32 s93, s91, 0\n s_load_dword s{sNONCE}, s[92:93], {OFF_EPOCH}")
        for n in ("C", "WM", "W", "X", "PHI", "WS", "WO", "W1", "B1", "W2", "B2", "OUT", "DBG"):
            b = SRD[n]
            if n == "WS" and self.o['wsbase']:
                a(f"s_add_u32 s{b}, s{ptr[n]}, {self.o['wsbase']}\n s_addc_u32 s{b+1}, s{ptr[n]+1}, 0\n s_mov_b32 s{b+2}, {WS_BYTES - self.o['wsbase']}\n s_mov_b32 s{b+3}, 0x00020000")
            else:
                a(f"s_mov_b32 s{b}, s{ptr[n]}\n s_mov_b32 s{b+1}, s{ptr[n]+1}\n s_mov_b32 s{b+2}, {size[n]}\n s_mov_b32 s{b+3}, 0x00020000")
        a(f"s_mov_b32 s{sL2E}, {LOG2E:#x}\n s_mov_b32 s{sL2E+1}, {LOG2E:#x}")

    def phaseA(self):
        a, vm, o = self.a, self.vm, self.o
        NT = "nt" if o.get("nt", 1) else ""
        a(f"""
        s_and_b32 s{sHPG}, s{sI}, 3
        s_lshr_b32 s70, s{sI}, 2
        s_lshl_b32 s71, s{sXCD}, 2
        s_add_u32 s{sSTEP}, s70, s71          ; i<16: 4*xcd + (i>>2)
        s_add_u32 s72, s{sXCD}, 32
        s_cmp_lt_u32 s{sI}, 16
        s_cselect_b32 s{sSTEP}, s{sSTEP}, s72  ; 16<=i: 32 + xcd
        s_lshl_b32 s{sCOLB}, s{sSTEP}, 4
        s_add_u32 s{sCOLA}, s{sCOLB}, 640
        s_mov_b32 s{sTYPE}, 1
        s_cmp_lt_u32 s{sI}, 20
        s_cbranch_scc1 L_A_T1
        s_mul_i32 s70, s{sXCD}, 10
        s_add_u32 s70, s70, s{sI}
        s_sub_u32 s70, s70, 20                ; idx2
        s_min_u32 s70, s70, 79
        s_lshl_b32 s70, s70, 5
        s_add_u32 s{sCOLA}, s70, 1280
        s_add_u32 s{sCOLB}, s{sCOLA}, 16
        s_mov_b32 s{sSTEP}, 0
        s_mov_b32 s{sTYPE}, 2
        s_cmp_lt_u32 s{sI}, 30
        s_cselect_b32 s{sTYPE}, s{sTYPE}, 3
        L_A_T1:
        """)
        a(f"v_lshlrev_b32 v2, 3, v0\n buffer_load_dwordx2 v[10:11], v2, {srd('C')}, 0 offen"); vm.issue("c")
        a(f"""
        v_lshrrev_b32 v3, 2, v1
        s_mul_i32 s70, s{sW}, 160
        v_add_u32 v3, s70, v3
        s_movk_i32 s71, 7680
        v_mul_lo_u32 v3, v3, s71
        s_lshl_b32 s72, s{sCOLA}, 1
        s_lshl_b32 s73, s{sCOLB}, 1
        v_and_b32 v4, 2, v1
        v_cmp_eq_u32 vcc, 0, v4
        v_mov_b32 v5, s73
        v_mov_b32 v6, s72
        v_cndmask_b32 v5, v5, v6, vcc
        v_and_b32 v4, 1, v1
        v_lshlrev_b32 v4, 4, v4
        v_add3_u32 v3, v3, v5, v4
        s_mul_i32 s74, s{sW}, 10240
        s_mov_b32 s75, 0
        """)
        for n in range(10):
            a(f"s_add_u32 m0, s74, {LA_SLAB + n*1024}")
            if n: a(f"s_add_u32 s75, s75, 122880")
            else: a("s_nop 0")
            a(f"buffer_load_dwordx4 v3, {srd('WM')}, s75 offen {NT} lds"); vm.issue("slab")
        a(f"""
        s_lshl_b32 s70, s{sHPG}, 2
        s_add_u32 s70, s70, s{sW}
        s_mul_i32 s71, s70, 80
        s_mul_i32 s72, s{sSTEP}, {16*3840}
        s_add_u32 s71, s71, s72
        s_lshl_b32 s74, s{sW}, 12
        """)
        for n in range(4):
            a(f"""
            v_add_u32 v4, {64*n}, v1
            v_min_u32 v4, 239, v4
            v_mul_u32_u24 v5, 4370, v4
            v_lshrrev_b32 v5, 16, v5             ; row
            v_mul_u32_u24 v6, 15, v5
            v_sub_u32 v4, v4, v6                 ; rem
            v_mul_u32_u24 v6, 13, v4
            v_lshrrev_b32 v6, 6, v6              ; part
            v_mul_u32_u24 v7, 5, v6
            v_sub_u32 v4, v4, v7                 ; pc
            v_mul_u32_u24 v5, 3840, v5
            v_mul_u32_u24 v6, 1280, v6
            v_lshlrev_b32 v4, 4, v4
            v_add3_u32 v4, v4, v5, v6
            s_add_u32 m0, s74, {LA_WSL + n*1024}
            s_nop 0
            buffer_load_dwordx4 v4, {srd('W')}, s71 offen {NT} lds
            """); vm.issue("wsl")
        a(f"""
        v_and_b32 v8, 7, v0
        v_lshrrev_b32 v9, 3, v0
        s_lshl_b32 s70, s{sRB}, 7
        s_lshl_b32 s71, s{sJ}, 3
        s_add_u32 s70, s70, s71
        v_add_u32 v4, s70, v8
        s_movk_i32 s71, 1280
        v_mul_lo_u32 v4, v4, s71
        v_lshl_add_u32 v4, v9, 4, v4
        v_cmp_gt_u32 vcc, 16, v9
        v_mov_b32 v5, {OOB}
        v_add_u32 v6, 1024, v4
        v_cndmask_b32 v5, v5, v6, vcc
        buffer_load_dwordx4 v[12:15], v4, {srd('X')}, 0 offen {NT}
        buffer_load_dwordx4 v[16:19], v4, {srd('X')}, 0 offen offset:512 {NT}
        buffer_load_dwordx4 v[20:23], v5, {srd('X')}, 0 offen {NT}
        """)
        for _ in range(3): vm.issue("x")
        a(f"""
        s_and_b32 s70, s{sW}, 1
        s_lshl_b32 s71, s70, 6
        v_add_u32 v4, s71, v1
        v_min_u32 v4, 99, v4
        v_lshlrev_b32 v4, 4, v4
        s_mul_i32 s72, s{sJ}, 1600
        s_lshl_b32 s70, s70, 10
        s_add_u32 m0, s70, {LM_WPHI}
        s_nop 0
        buffer_load_dwordx4 v4, {srd('PHI')}, s72 offen lds
        """); vm.issue("phi")
        self.stamp()
        vm.wait("c")
        self.lo(24, 10); self.hi(25, 10); self.lo(26, 11); self.hi(27, 11)
        for k in range(4): a(f"v_mul_f32 v{28+k}, s{sL2E}, v{24+k}")
        for k in range(4): a(f"v_exp_f32 v{28+k}, -v{28+k}")
        for k in range(4): a(f"v_add_f32 v{28+k}, 1.0, v{28+k}")
        for k in range(4): a(f"v_rcp_f32 v{28+k}, v{28+k}")
        for k in range(4): a(f"v_mul_f32 v{24+k}, v{24+k}, v{28+k}")
        a(f"""
        v_cvt_pk_bf16_f32 v24, v24, v25
        v_cvt_pk_bf16_f32 v25, v26, v27
        v_add_u32 v2, {LA_SILU}, v2
        ds_write_b64 v2, v[24:25]
        v_mov_b32 v28, 0
        v_mov_b32 v29, 0
        v_mov_b32 v30, 0
        v_mov_b32 v31, 0
        v_min_u32 v26, 47, v1
        v_lshlrev_b32 v26, 4, v26
        v_add_u32 v26, {LM_ZERO}, v26
        ds_write_b128 v26, v[28:31]
        s_waitcnt lgkmcnt(0)
        s_barrier
        """)
        a(f"""
        v_lshrrev_b32 v2, 4, v1                ; g
        v_bfe_u32 v3, v1, 2, 2                 ; r
        v_and_b32 v4, 3, v1                    ; c
        s_mul_i32 s70, s{sW}, 320
        v_lshlrev_b32 v5, 3, v2
        v_add_u32 v5, s70, v5
        v_add_u32 v5, {LA_SILU}, v5
        v_lshl_add_u32 v6, v2, 2, v3           ; 4g + r
        v_lshlrev_b32 v6, 6, v6
        v_lshl_add_u32 v6, v4, 3, v6
        s_mul_i32 s71, s{sW}, 10240
        v_add_u32 v6, s71, v6
        """)
        for n in range(5):
            a(f"ds_read_b64 v[{32+4*n}:{33+4*n}], v5 offset:{64*n}\n ds_read_b64 v[{34+4*n}:{35+4*n}], v5 offset:{64*n+32}")
        vm.wait("slab")
        for n in range(5):
            for t in range(2):
                b = 56 + 8*n + 4*t
                a(f"ds_read_b64_tr_b16 v[{b}:{b+1}], v6 offset:{LA_SLAB + n*2048 + t*32}")
                a(f"ds_read_b64_tr_b16 v[{b+2}:{b+3}], v6 offset:{LA_SLAB + n*2048 + 1024 + t*32}")
        a("s_waitcnt lgkmcnt(0)")
        for n in range(5):
            for t in range(2):
                b = 56 + 8*n + 4*t
                c = "0" if n == 0 else f"v[{96+4*t}:{99+4*t}]"
                a(f"v_mfma_f32_16x16x32_bf16 v[{96+4*t}:{99+4*t}], v[{32+4*n}:{35+4*n}], v[{b}:{b+3}], {c}")
        vm.wait("x")
        for k in range(12):
            self.lo(104+2*k, 12+k); self.hi(105+2*k, 12+k)
        a("v_pk_add_f32 v[30:31], v[104:105], v[106:107]\n v_pk_mul_f32 v[32:33], v[104:105], v[104:105]\n v_pk_fma_f32 v[32:33], v[106:107], v[106:107], v[32:33]")
        for k in range(2, 12):
            a(f"v_pk_add_f32 v[30:31], v[30:31], v[{104+2*k}:{105+2*k}]\n v_pk_fma_f32 v[32:33], v[{104+2*k}:{105+2*k}], v[{104+2*k}:{105+2*k}], v[32:33]")
        a("""
        v_add_f32 v30, v30, v31
        v_add_f32 v31, v32, v33
        """)
        for r in (30, 31): a(f"v_add_f32_dpp v{r}, v{r}, v{r} row_ror:8 row_mask:0xf bank_mask:0xf")
        for sw in ("v_permlane16_swap_b32", "v_permlane32_swap_b32"):
            a(f"v_mov_b32 v32, v30\n v_mov_b32 v33, v31\n {sw} v32, v30\n {sw} v33, v31\n v_add_f32 v30, v30, v32\n v_add_f32 v31, v31, v33")
        a(f"""
        s_lshl_b32 s70, s{sW}, 6
        v_lshl_add_u32 v2, v8, 3, s70
        v_add_u32 v2, {LA_LNP}, v2
        ds_write_b64 v2, v[30:31]
        s_lshl_b32 s70, s{sW}, 7
        v_and_b32 v3, 15, v1
        v_lshl_add_u32 v3, v3, 2, s70
        v_add_u32 v3, {LA_PART}, v3
        ds_write_b32 v3, v96
        ds_write_b32 v3, v100 offset:64
        s_waitcnt lgkmcnt(0)
        s_barrier
        """)
        a(f"v_lshlrev_b32 v2, 3, v8\n v_add_u32 v2, {LA_LNP}, v2")
        for w in range(4): a(f"ds_read_b64 v[{32+2*w}:{33+2*w}], v2 offset:{64*w}")
        a(f"v_lshrrev_b32 v3, 5, v1\n v_lshlrev_b32 v3, 5, v3\n v_add_u32 v3, {LA_PART}, v3")
        for w in range(4):
            for t in range(2):
                for h in range(2):
                    b = 136 + 16*w + 8*t + 4*h
                    a(f"ds_read_b128 v[{b}:{b+3}], v3 offset:{128*w + 64*t + 16*h}")
        a("s_waitcnt lgkmcnt(0)")
        a(f"""
        v_pk_add_f32 v[32:33], v[32:33], v[34:35]
        v_pk_add_f32 v[36:37], v[36:37], v[38:39]
        v_pk_add_f32 v[32:33], v[32:33], v[36:37]
        v_mul_f32 v32, 0x3acccccd, v32          ; mean = s1/640
        v_mul_f32 v33, 0x3acccccd, v33          ; E[x^2]
        v_fma_f32 v33, -v32, v32, v33
        v_max_f32 v33, 0, v33
        v_add_f32 v33, 0x3727c5ac, v33          ; + 1e-5
        v_rsq_f32 v34, v33
        s_nop 0
        v_mul_f32 v36, v32, v34
        v_sub_f32 v36, 0, v36
        v_mov_b32 v35, v34
        v_mov_b32 v37, v36
        """)
        for k in range(12):
            a(f"v_pk_fma_f32 v[{104+2*k}:{105+2*k}], v[{104+2*k}:{105+2*k}], v[34:35], v[36:37]")
        for k in range(12):
            a(f"v_cvt_pk_bf16_f32 v{12+k}, v{104+2*k}, v{105+2*k}")
        a(f"""
        s_lshl_b32 s70, s{sRB}, 2
        s_lshr_b32 s71, s{sJ}, 2
        s_add_u32 s70, s70, s71
        s_mul_i32 s70, s70, 40960
        s_and_b32 s71, s{sJ}, 3
        s_lshl_b32 s71, s71, 7
        s_add_u32 s70, s70, s71
        s_add_u32 s70, s70, {OFF_XH}
        v_lshrrev_b32 v4, 1, v9
        v_lshlrev_b32 v4, 10, v4
        v_and_b32 v5, 1, v9
        v_lshlrev_b32 v5, 9, v5
        v_lshlrev_b32 v6, 4, v8
        v_add3_u32 v4, v4, v5, v6
        v_cmp_gt_u32 vcc, 16, v9
        v_mov_b32 v5, {OOB}
        v_add_u32 v6, 32768, v4
        v_cndmask_b32 v5, v5, v6, vcc
        v_add_u32 v6, 16384, v4
        buffer_store_dwordx4 v[12:15], v4, {srd('WS')}, s70 offen sc1
        buffer_store_dwordx4 v[16:19], v6, {srd('WS')}, s70 offen sc1
        buffer_store_dwordx4 v[20:23], v5, {srd('WS')}, s70 offen sc1
        """)
        for _ in range(3): vm.issue("st")
        a(f"s_cmp_eq_u32 s{sTYPE}, 1\n s_cbranch_scc0 L_A_T2")
        for t in range(2):
            for h in range(4):
                b = 136 + 8*t + 2*h
                a(f"v_pk_add_f32 v[{b}:{b+1}], v[{b}:{b+1}], v[{b+16}:{b+17}]\n v_pk_add_f32 v[{b+32}:{b+33}], v[{b+32}:{b+33}], v[{b+48}:{b+49}]\n v_pk_add_f32 v[{b}:{b+1}], v[{b}:{b+1}], v[{b+32}:{b+33}]")
        for h in range(8):
            a(f"v_cvt_pk_bf16_f32 v{152+h}, v{136+2*h}, v{137+2*h}")
        for h in range(8):
            self.lo(136+2*h, 152+h); self.hi(137+2*h, 152+h)
        for h in range(8): a(f"v_add_f32 v{136+h}, 1.0, v{136+h}")
        for h in range(4): a(f"v_cvt_pk_bf16_f32 v{152+h}, v{136+2*h}, v{137+2*h}")
        for h in range(4):
            self.lo(136+2*h, 152+h); self.hi(137+2*h, 152+h)
        a(f"""
        v_lshrrev_b32 v2, 5, v1                ; khalf
        v_bfe_u32 v3, v1, 2, 2                 ; r
        v_lshl_add_u32 v2, v2, 3, v3
        v_mul_u32_u24 v2, 240, v2
        s_lshl_b32 s70, s{sW}, 12
        v_add_u32 v2, s70, v2
        v_add_u32 v2, {LA_WSL}, v2
        v_bfe_u32 v3, v1, 4, 1                 ; mhalf
        v_and_b32 v4, 3, v1                    ; c
        v_lshl_add_u32 v3, v3, 2, v4           ; cc
        v_and_b32 v4, 1, v3                    ; hh
        v_mul_u32_u24 v4, 40, v4
        v_add_u32 v2, v2, v4                   ; + hh*40
        v_lshrrev_b32 v3, 1, v3                ; i
        """)
        tab = [80 + 8*s if s < 5 else (160 + 8*(s-5) if s < 10 else 8*(min(s, 14)-10)) for s in range(16)]
        for t in range(4):
            e = tab[4*t:4*t+4]
            a(f"v_mov_b32 v5, {e[0]}")
            for i in range(1, 4):
                a(f"v_cmp_eq_u32 vcc, {i}, v3\n v_mov_b32 v6, {e[i]}\n v_cndmask_b32 v5, v5, v6, vcc")
            a(f"v_add_u32 v{40+t}, v2, v5")
        vm.wait("wsl")
        for t in range(4):
            a(f"ds_read_b64_tr_b16 v[{44+4*t}:{45+4*t}], v{40+t}\n ds_read_b64_tr_b16 v[{46+4*t}:{47+4*t}], v{40+t} offset:960")
        a(f"""
        s_lshl_b32 s70, s{sHPG}, 2
        s_add_u32 s70, s70, s{sW}              ; hp
        s_mul_i32 s71, s70, {WP_STRIDE}
        s_add_u32 s71, s71, {OFF_WP}
        s_mul_i32 s72, s{sSTEP}, 3072
        s_add_u32 s72, s72, s71
        s_mul_i32 s73, s{sSTEP}, 768
        s_add_u32 s73, s73, s71
        s_add_u32 s73, s73, 122880
        s_mul_i32 s74, s70, 40
        s_add_u32 s74, s74, s{sSTEP}
        s_lshl_b32 s74, s74, 9
        s_add_u32 s74, s74, {OFF_TPART}        ; tpart base
        v_lshlrev_b32 v7, 4, v1                ; l*16
        v_and_b32 v8, 31, v1                   ; m
        v_lshrrev_b32 v9, 5, v1                ; khalf
        v_mul_u32_u24 v9, 384, v9
        v_lshl_add_u32 v9, v8, 4, v9
        v_cmp_gt_u32 vcc, 24, v8
        v_mov_b32 v10, {OOB}
        v_cndmask_b32 v9, v10, v9, vcc
        v_lshlrev_b32 v8, 2, v8
        v_cmp_gt_u32 vcc, 32, v1
        v_cndmask_b32 v8, v10, v8, vcc         ; tpart offset
        s_waitcnt lgkmcnt(0)
        """)
        for t in range(4):
            b = 44 + 4*t
            for k in range(4):
                self.lo(64+2*k, b+k); self.hi(65+2*k, b+k)
            a(f"v_mul_f32 v72, v64, v144")
            for k in range(1, 8): a(f"v_fmac_f32 v72, v{64+k}, v{144+k}")
            for k in range(4): a(f"v_pk_mul_f32 v[{64+2*k}:{65+2*k}], v[{64+2*k}:{65+2*k}], v[{136+2*k}:{137+2*k}]")
            for k in range(4): a(f"v_cvt_pk_bf16_f32 v{76+4*t+k}, v{64+2*k}, v{65+2*k}")
            a(f"v_mov_b32 v73, v72\n s_nop 1\n v_permlane32_swap_b32 v73, v72\n v_add_f32 v{92+t}, v72, v73")
            if t < 3:
                a(f"buffer_store_dwordx4 v[{76+4*t}:{79+4*t}], v7, {srd('WS')}, s72 offen offset:{1024*t} sc1")
            else:
                a(f"buffer_store_dwordx4 v[{76+4*t}:{79+4*t}], v9, {srd('WS')}, s73 offen sc1")
            a(f"buffer_store_dword v{92+t}, v8, {srd('WS')}, s74 offen offset:{128*t} sc1")
        a("s_branch L_A_DONE")
        a(f"""
        L_A_T2:
        s_cmp_eq_u32 s{sTYPE}, 2
        s_cbranch_scc0 L_A_DONE
        v_and_b32 v2, 31, v1
        v_lshrrev_b32 v3, 4, v2
        v_and_b32 v4, 15, v2
        v_lshlrev_b32 v3, 6, v3
        v_lshl_add_u32 v3, v4, 2, v3
        v_add_u32 v3, {LA_PART}, v3
        ds_read_b32 v32, v3
        ds_read_b32 v33, v3 offset:128
        ds_read_b32 v34, v3 offset:256
        ds_read_b32 v35, v3 offset:384
        s_waitcnt lgkmcnt(0)
        v_add_f32 v32, v32, v33
        v_add_f32 v34, v34, v35
        v_add_f32 v32, v32, v34
        v_cvt_pk_bf16_f32 v32, v32, v32
        v_and_b32 v32, 0xffff0000, v32
        v_lshlrev_b32 v2, 2, v2
        v_cmp_gt_u32 vcc, 32, v0
        v_mov_b32 v3, {OOB}
        v_cndmask_b32 v2, v3, v2, vcc
        s_lshl_b32 s70, s{sCOLA}, 2
        s_add_u32 s70, s70, {OFF_MODV}
        buffer_store_dword v32, v2, {srd('WS')}, s70 offen sc1
        L_A_DONE:
        """)
        vm.drain()
        a("s_barrier")
        self.stamp()
        a(f"""
        s_waitcnt lgkmcnt(0)
        s_add_u32 s{sNONCE}, s{sNONCE}, {NONCE_STEP:#x}
        """)
        self.set_flag(f"s_lshl_b32 s70, s2, 2\n s_add_u32 s70, s70, {OFF_FLAGA}")

    def set_flag(self, addr_code):
        a = self.a
        lab = f"L_SF{len(a.items)}"
        a(f"s_cmp_lg_u32 s{sW}, 0\n s_cbranch_scc1 {lab}")
        a(addr_code)
        a(f"""
        v_mov_b32 v2, s{sNONCE}
        v_mov_b32 v3, 0
        s_mov_b64 exec, 1
        buffer_store_dword v2, v3, {srd('WS')}, s70 offen sc1
        s_mov_b64 exec, -1
        {lab}:
        """)

    def finish(self):
        a = self.a
        if self.o.get("stamps"):
            a("s_waitcnt lgkmcnt(0)")
            a(f"s_lshl_b32 s70, s2, 2\n s_add_u32 s70, s70, s{sW}\n s_lshl_b32 s70, s70, 7\n s_add_u32 s70, s70, {WS_END}")
            a("v_lshlrev_b32 v3, 2, v1\n v_mov_b32 v2, 0")
            for k in range(self.nstamp):
                a(f"v_writelane_b32 v2, s{80+2*k}, {k}")
            a(f"s_mov_b64 exec, 0xffff\n buffer_store_dword v2, v3, {srd('WS')}, s70 offen\n s_mov_b64 exec, -1")
        a("L_END:\n s_endpgm")

    def build(self):
        o = self.o
        self.prologue()
        self.stamp()
        self.phaseA()
        stop = o.get("stop", "")
        if stop != "A":
            import gen_main
            gen_main.rest(self)
        self.finish()
        errs = self.a.check_waits()
        for e in errs[:20]: print("WAITCHK:", e, file=sys.stderr)
        assert not errs or o.get("nocheck"), "waitcnt check failed"
        body = self.a.finalize()
        hdr = open("cdna_kernels/" + NAME + ".s.ref").read().split("; Override launch geometry")[0]
        return f"""{hdr}; Override launch geometry by editing the next line (default: block=256,
; grid=ceil(out_elems/256), lds=0). Harness parses it; keep it on one line.
; @launch grid=(256,1,1) block=(256,1,1) lds={LDS_BYTES}
.amdgcn_target "amdgcn-amd-amdhsa--gfx950"
.text
.globl {NAME}_kernel
.p2align 8
.type {NAME}_kernel,@function
{NAME}_kernel:
{body}.section .rodata,"a"
.p2align 6
.amdhsa_kernel {NAME}_kernel
  .amdhsa_next_free_vgpr 512
  .amdhsa_next_free_sgpr 102
  .amdhsa_accum_offset 256
  .amdhsa_group_segment_fixed_size 0
  .amdhsa_kernarg_size 112
  .amdhsa_user_sgpr_count 2
  .amdhsa_user_sgpr_kernarg_segment_ptr 1
  .amdhsa_system_sgpr_workgroup_id_x 1
  .amdhsa_float_denorm_mode_32 3
.end_amdhsa_kernel
"""

def main():
    opt = dict(wsbase=0, nt=1)
    out = None
    for arg in sys.argv[1:]:
        if "=" in arg:
            k, v = arg.split("=", 1)
            if k == "out": out = v
            else:
                try: v = int(v, 0)
                except ValueError: pass
                opt[k] = v
    txt = Gen(opt).build()
    if out: open(out, "w").write(txt)
    else: sys.stdout.write(txt)

if __name__ == "__main__":
    main()
```
